```python
import torch

def _softmax(x, axis=-1):
    return torch.softmax(x, dim=axis)
def _gelu(x):
    return torch.nn.functional.gelu(x, approximate="tanh")
def _silu(x):
    return torch.nn.functional.silu(x)
def _sigmoid(x):
    return torch.sigmoid(x)
def _layernorm(x, axis=-1, eps=1e-5):
    m = x.mean(dim=axis, keepdim=True)
    v = x.var(dim=axis, keepdim=True, unbiased=False)
    return (x - m) / torch.sqrt(v + eps)
def _scatter_add(tgt, idx, src, axis=0):
    return tgt.clone().index_add_(axis, idx, src)
def _segment_sum(src, seg, n):
    out = torch.zeros((n,) + src.shape[1:], dtype=src.dtype)
    return out.index_add_(0, seg, src)
def _pad(x, pw):
    flat = tuple(v for pair in reversed(pw) for v in pair)
    return torch.nn.functional.pad(x, flat)

kernel_name = 'parallel_sum__sliding_local_dilated__mixer_s_mlp__prompt'

def setup_inputs():

    _w = (lambda a: (lambda t: t.to(torch.bfloat16) if t.is_floating_point() else t)(torch.as_tensor(a)))
    def _A_setup():
        B, S, D = 1, 2048, 512
        return {
            "x": _w((lambda *s: torch.randn(*s, dtype=torch.bfloat16) * 0.05)(B, S, D)),
            "wqkv": _w((lambda *s: torch.randn(*s, dtype=torch.bfloat16) * 0.05)(D, 3 * D)),
            "wo": _w((lambda *s: torch.randn(*s, dtype=torch.bfloat16) * 0.05)(D, D)),
        }
    _A_in = _A_setup()

    def _B_setup():
        B, S, D, F = 1, 2048, 512, 1792
        return {
            "x":  _w((lambda *s: torch.randn(*s, dtype=torch.bfloat16) * 0.05)(B, S, D)),
            "w1": _w((lambda *s: torch.randn(*s, dtype=torch.bfloat16) * 0.8)(D, D) * (D ** -0.5)),
            "w2": _w((lambda *s: torch.randn(*s, dtype=torch.bfloat16) * 0.8)(D, D) * (D ** -0.5)),
            "w3": _w((lambda *s: torch.randn(*s, dtype=torch.bfloat16) * 0.8)(D, F) * (D ** -0.5)),
            "w4": _w((lambda *s: torch.randn(*s, dtype=torch.bfloat16) * 0.8)(F, D) * (F ** -0.5)),
        }
    _B_in = _B_setup()

    return {
        "A_x": _A_in["x"],
        "A_wqkv": _A_in["wqkv"],
        "A_wo": _A_in["wo"],
        "B_x": _B_in["x"],
        "B_w1": _B_in["w1"],
        "B_w2": _B_in["w2"],
        "B_w3": _B_in["w3"],
        "B_w4": _B_in["w4"],
    }

def reference(A_x, A_wqkv, A_wo, B_x, B_w1, B_w2, B_w3, B_w4):
    def _A_ref(x, wqkv, wo):
        B, S, D = x.shape
        H = 32; Dh = D // H
        W, dil = 8, 2
        qkv = (lambda x, *d: x.permute(*d))((x @ wqkv).reshape(B, S, 3, H, Dh), 2, 0, 3, 1, 4)
        q, k, v = qkv[0], qkv[1], qkv[2]
        scale = Dh ** -0.5
        pos = torch.arange(S)
        off = torch.arange(W) * dil
        idx = pos[:, None] - off[None, :]
        mask = idx >= 0
        idx_c = torch.where(mask, idx, 0).reshape(-1)
        kg = k[:, :, idx_c, :].reshape(B, H, S, W, Dh)
        vg = v[:, :, idx_c, :].reshape(B, H, S, W, Dh)
        logits = torch.einsum("bhsd,bhswd->bhsw", q, kg) * scale
        logits = torch.where(mask[None, None, :, :], logits, -1e9)
        attn = _softmax(logits, axis=-1)
        o = torch.einsum("bhsw,bhswd->bhsd", attn, vg)
        return (lambda x, *d: x.permute(*d))(o, 0, 2, 1, 3).reshape(B, S, D) @ wo

    def _B_ref(x, w1, w2, w3, w4):
        B, S, D = x.shape
        h = _gelu(_layernorm(x, axis=-1) @ w1)
        c = D // 4
        g0 = _pad(h[:, :, 0*c:1*c], ((0, 0), (1, 0), (0, 0)))[:, :S, :]
        g1 = _pad(h[:, :, 1*c:2*c], ((0, 0), (0, 1), (0, 0)))[:, 1:, :]
        g2 = _pad(h[:, :, 2*c:3*c], ((0, 0), (2, 0), (0, 0)))[:, :S, :]
        g3 = _pad(h[:, :, 3*c:   ], ((0, 0), (0, 2), (0, 0)))[:, 2:, :]
        hs = torch.concatenate([g0, g1, g2, g3], axis=-1) @ w2
        x1 = x + hs
        h2 = _gelu(_layernorm(x1, axis=-1) @ w3) @ w4
        return x1 + h2

    x = A_x
    xn = _layernorm(x, axis=-1)
    return x + _A_ref(xn, A_wqkv, A_wo) + _B_ref(xn, B_w1, B_w2, B_w3, B_w4)
```

```python
NAME = "parallel_sum__sliding_local_dilated__mixer_s_mlp__prompt"

HEADER_COMMENT = """; Kernarg layout for this problem (88 bytes, ptrs only, base s[0:1]):
"""

class Asm:
    def __init__(self):
        self.lines = []
        self.nlabel = 0
    def __call__(self, s):
        for l in s.strip("\n").split("\n"):
            self.lines.append("    " + l.strip() if not l.strip().endswith(":") else l.strip())
    def c(self, s):
        self.lines.append("    ; " + s)
    def label(self, name=None):
        if name is None:
            name = f"L{self.nlabel}"; self.nlabel += 1
        self.lines.append(name + ":")
        return name
    def newlabel(self, base="L"):
        self.nlabel += 1
        return f"{base}{self.nlabel}"
    def text(self):
        return "\n".join(self.lines) + "\n"

def wrap(body, grid, block, lds, vgpr, sgpr=102, accum=None, name=NAME + "_kernel"):
    accum = accum if accum is not None else (vgpr + 3) // 4 * 4
    s = HEADER_COMMENT
    s += f"; @launch grid=({grid},1,1) block=({block},1,1) lds={lds}\n"
    s += '.amdgcn_target "amdgcn-amd-amdhsa--gfx950"\n.text\n'
    s += f".globl {name}\n.p2align 8\n.type {name},@function\n{name}:\n"
    s += body
    s += f"""    s_endpgm
.section .rodata,"a"
.p2align 6
.amdhsa_kernel {name}
  .amdhsa_next_free_vgpr {vgpr}
  .amdhsa_next_free_sgpr {sgpr}
  .amdhsa_accum_offset {accum}
  .amdhsa_group_segment_fixed_size 0
  .amdhsa_kernarg_size 88
  .amdhsa_user_sgpr_count 2
  .amdhsa_user_sgpr_kernarg_segment_ptr 1
  .amdhsa_system_sgpr_workgroup_id_x 1
  .amdhsa_float_denorm_mode_32 3
  .amdhsa_float_denorm_mode_16_64 3
.end_amdhsa_kernel
"""
    return s

def vr(a, n=1):
    return f"v{a}" if n == 1 else f"v[{a}:{a+n-1}]"
def ar(a, n=1):
    return f"a{a}" if n == 1 else f"a[{a}:{a+n-1}]"
def sr(a, n=1):
    return f"s{a}" if n == 1 else f"s[{a}:{a+n-1}]"
```

```python
import re

REG = re.compile(r"\b([vas])(\d+)\b|\b([vas])\[(\d+):(\d+)\]|\b(vcc|exec|m0|scc)\b|\b(vcc_lo|vcc_hi|exec_lo|exec_hi)\b")

def regs_of(tok):
    out = []
    for m in REG.finditer(tok):
        if m.group(1): out.append((m.group(1), int(m.group(2))))
        elif m.group(3): out += [(m.group(3), i) for i in range(int(m.group(4)), int(m.group(5)) + 1)]
        elif m.group(6): out.append((m.group(6), 0))
        elif m.group(7): out.append((m.group(7)[:-3], 0))
    return out

TRANS = ("v_exp_f32", "v_log_f32", "v_rcp_f32", "v_rsq_f32", "v_sqrt_f32", "v_sin_f32", "v_cos_f32")

class Ins:
    def __init__(self, line):
        self.line = line
        s = line.split(";")[0].strip()
        self.is_ins = bool(s) and not s.endswith(":") and not s.startswith(".")
        self.is_label = s.endswith(":")
        self.w = set(); self.r = set(); self.kind = None; self.passes = 0; self.srcC = set(); self.srcAB = set(); self.D = set()
        self.states = 0
        if not self.is_ins: return
        parts = s.split(None, 1)
        op = parts[0]; self.op = op
        rest = parts[1] if len(parts) > 1 else ""
        ops = [o.strip() for o in re.split(r",(?![^\[]*\])", rest)]
        self.states = 1
        base = re.sub(r"_(e32|e64|dpp|sdwa)$", "", op)
        self.base = base
        if op == "s_nop":
            self.states = int(ops[0], 0) + 1; self.kind = "nop"; return
        if op.startswith("v_mfma"):
            self.kind = "mfma"
            self.passes = 8 if "32x32" in op else 4
            self.D = set(regs_of(ops[0])); self.srcAB = set(regs_of(ops[1]) + regs_of(ops[2])); self.srcC = set(regs_of(ops[3]))
            self.w = set(self.D); self.r = self.srcAB | self.srcC
            return
        if op.startswith("v_"):
            self.kind = "valu"
            self.trans = base in TRANS
            self.dpp = "_dpp" in op or "row_" in rest or "quad_perm" in rest
            self.perm = base.startswith("v_permlane")
            self.rdlane = base in ("v_readfirstlane_b32", "v_readlane_b32")
            if base.startswith("v_cmp"):
                self.w = set(regs_of(ops[0])); self.r = set(sum((regs_of(o) for o in ops[1:]), []))
                if base.startswith("v_cmpx"): self.w.add(("exec", 0))
            elif self.perm:
                self.w = set(regs_of(ops[0]) + regs_of(ops[1])); self.r = set(self.w)
            else:
                self.w = set(regs_of(ops[0])); self.r = set(sum((regs_of(o) for o in ops[1:]), []))
                if base in ("v_add_co_u32", "v_addc_co_u32", "v_sub_co_u32"):
                    self.w |= set(regs_of(ops[1]))
                if base in ("v_fmac_f32", "v_dot2c_f32_bf16", "v_writelane_b32") or self.dpp:
                    self.r |= set(regs_of(ops[0]))
                if base == "v_cndmask_b32" and len(ops) == 3: self.r.add(("vcc", 0))
            return
        if op.startswith("buffer_") or op.startswith("global_"):
            self.kind = "vmem"
            allr = sum((regs_of(o) for o in ops), [])
            self.lds = bool(re.search(r"\blds\b", rest))
            self.store = "store" in op or "atomic" in op
            self.wide = self.store and ("x4" in op or "x3" in op)
            if self.lds:
                self.r = set(allr) | {("m0", 0)}
            elif "load" in op:
                self.w = set(regs_of(ops[0])); self.r = set(sum((regs_of(o) for o in ops[1:]), []))
            else:
                self.r = set(allr); self.data = set(regs_of(ops[0] if op.startswith("buffer_") else ops[1]))
                if "atomic" in op and "sc0" in rest: self.w = set(regs_of(ops[0]))
            return
        if op.startswith("ds_"):
            self.kind = "ds"
            if "read" in op or "permute" in op or "swizzle" in op:
                self.w = set(regs_of(ops[0])); self.r = set(sum((regs_of(o) for o in ops[1:]), []))
            else:
                self.r = set(sum((regs_of(o) for o in ops), []))
            return
        if op.startswith("s_"):
            self.kind = "salu"
            if op.startswith(("s_cmp", "s_cbranch", "s_branch", "s_waitcnt", "s_barrier", "s_endpgm", "s_sleep", "s_setprio", "s_bitcmp")):
                self.r = set(sum((regs_of(o) for o in ops), []))
            else:
                self.w = set(regs_of(ops[0])); self.r = set(sum((regs_of(o) for o in ops[1:]), []))
                if "saveexec" in op: self.w.add(("exec", 0))
            return
        raise ValueError("unknown instr: " + line)

def need(p, c):
    n = 0
    vw = {r for r in p.w if r[0] in "va"}
    sw = {r for r in p.w if r[0] == "s" or r[0] == "vcc"}
    if p.kind == "valu":
        if c.kind == "mfma" and vw & c.r: n = max(n, 2)
        if c.kind == "valu":
            if p.trans and not c.trans and vw & c.r: n = max(n, 1)
            if p.trans and c.trans and vw & c.r: n = max(n, 1)
            if (c.perm or c.dpp) and vw & c.r: n = max(n, 2)
            if c.rdlane and vw & c.r: n = max(n, 1)
            if sw & c.r: n = max(n, 4 if c.base in ("v_readlane_b32", "v_writelane_b32") else 2)
            if ("exec", 0) in p.w: n = max(n, 5 if c.dpp else 4 if (c.perm or c.rdlane) else 0)
            if "op_sel" in p.line and not p.base.startswith("v_pk_") and vw & (c.r | c.w): n = max(n, 1)
        if c.kind == "vmem" and sw & c.r: n = max(n, 5)
        if c.kind == "salu" and sw & c.r: n = max(n, 2)
        if c.kind == "mfma" and ("exec", 0) in p.w: n = max(n, 4)
        if p.trans and c.kind in ("vmem", "ds") and vw & c.r: n = max(n, 1)
    if p.kind == "mfma":
        big = {4: 8, 8: 12}[p.passes]
        if c.kind == "mfma":
            if p.D & c.srcAB: n = max(n, big)
            if p.D & c.srcC:
                if not (p.D == c.srcC and p.passes == c.passes and p.op == c.op): n = max(n, big - 2)
            elif p.D & c.D: n = max(n, big)
        elif c.kind in ("valu", "vmem", "ds"):
            if p.D & (c.r | c.w): n = max(n, big)
            if c.kind == "valu" and p.srcC & c.w: n = max(n, {4: 3, 8: 7}[p.passes])
            if c.kind in ("vmem", "ds") and p.srcC & c.w: n = max(n, {4: 3, 8: 7}[p.passes])
    if p.kind == "salu":
        if ("m0", 0) in p.w and c.kind == "vmem" and c.lds: n = max(n, 1)
    if p.kind == "vmem" and p.store and p.wide:
        if c.kind == "valu" and p.data & c.w: n = max(n, 2)
        elif c.kind in ("vmem", "ds", "mfma") and p.data & c.w: n = max(n, 1)
    return n

def fix(lines, verbose=False):
    out = []; win = []
    nins = 0
    for line in lines:
        i = Ins(line)
        if not i.is_ins:
            out.append(line); continue
        dist = 0; pad = 0
        for p in reversed(win):
            k = need(p, i) - dist
            if k > pad: pad = k; why = p.line
            dist += p.states
            if dist >= 20: break
        if pad > 0:
            if verbose: print(f"pad {pad} before [{line.strip()}] for [{why.strip()}]")
            nop = f"    s_nop {pad-1}"
            out.append(nop); win.append(Ins(nop)); nins += 1
        out.append(line); win.append(i)
        if len(win) > 40: win = win[-30:]
    return out, nins
```

```python
import sys
sys.path.insert(0, "gen")
from asmlib import *
import hazard

WS_G, WS_O, WS_X1, WS_H3, WS_ST, WS_CNT, WS_DIAG = 0, 2 << 20, 4 << 20, 6 << 20, 14 << 20, 15 << 20, 16 << 20
WS_SIZE = 17 << 20
CNT_H, CNT_O, CNT_X, CNT_H3 = 0, 32, 64, 80
R = 81920
TBL = R + 73728
T_MEAN, T_RSTD, T_A2 = 0, 320, 640
CS3 = TBL + 1024
LDS_BYTES = 163840
sX, sWQKV, sWO, sW1, sW2, sW3, sW4, sOUT, sWS, sDBG, sCODE = 4, 8, 12, 16, 20, 24, 28, 32, 36, 40, 44
sW, sRQ, sC8, sRB, sU14, sROT, sW1K = 48, 49, 50, 51, 52, 53, 54
sXK, sW1Ks, sQK = 56, 64, 72
sT0, sT1, sT2, sT3 = 80, 81, 82, 83
sM1, sM2, sM3, sMD = 84, 86, 88, 90
sMZ = 92
sTS = 96
sC0, sC1 = 98, 100
sSPIN = 55; SPINMAX = 200000
EPS = 1e-5
import struct, math
def f2u(x): return struct.unpack("<I", struct.pack("<f", x))[0]
def fl(x): return hex(f2u(x))
GC0 = -2 * math.sqrt(2 / math.pi) * math.log2(math.e)
GC1 = GC0 * 0.044715
QSCALE = 0.25 * math.log2(math.e)

class G(Asm):
    def __init__(self, diag=False):
        super().__init__()
        self.vm = []; self.lg = []; self.diag = diag; self.nts = 0
    def vmem(self, s, tag=None):
        self(s); self.vm.append(tag)
    def ds(self, s, tag=None):
        self(s); self.lg.append(tag)
    def _n(self, lst, tag):
        idx = [i for i, t in enumerate(lst) if t == tag]
        if not idx: return None
        return len(lst) - 1 - idx[-1]
    def wait(self, vm=None, lg=None):
        parts = []
        if vm is not None:
            n = 0 if vm == "all" else self._n(self.vm, vm)
            if n is not None:
                n = min(n, 63); parts.append(f"vmcnt({n})"); self.vm = self.vm[len(self.vm) - n:] if n else []
        if lg is not None:
            n = 0 if lg == "all" else self._n(self.lg, lg)
            if n is not None:
                n = min(n, 15); parts.append(f"lgkmcnt({n})"); self.lg = self.lg[len(self.lg) - n:] if n else []
        if parts: self("s_waitcnt " + " ".join(parts))
    def ts(self, name):
        if not self.diag: return
        self.c(f"TS {self.nts} {name}")
        self(f"s_memtime s[{sTS}:{sTS+1}]\ns_waitcnt lgkmcnt(0)\nv_writelane_b32 v{vTS}, s{sTS}, {self.nts}")
        self.lg = []
        TSNAMES.append(name); self.nts += 1
    def dma(self, srd, voff, soff_expr, lds, tag, extra=""):
        sreg, imm = soff_expr
        if sreg is None: self(f"s_mov_b32 s{sT0}, {imm}"); so = f"s{sT0}"
        elif imm == 0: so = f"s{sreg}"
        else: self(f"s_add_u32 s{sT0}, s{sreg}, {imm}"); so = f"s{sT0}"
        lreg, limm = lds if isinstance(lds, tuple) else (sW1K, lds)
        self(f"s_add_u32 m0, s{lreg}, {limm}")
        self.vmem(f"buffer_load_dwordx4 v{voff}, s[{srd}:{srd+3}], {so} offen{extra} lds", tag)
TSNAMES = []

vL = 1
vW1024, vW3072, vW3584 = 2, 3, 4
vXd0, vXd1, vXh = 5, 6, 7
vTR16a, vTR16b = 8, 9
vXr0, vXr1, vXh0, vXh1 = 10, 11, 12, 13
vTS = 14
vL16 = 15
vONE = 16
vLP32 = 20
vACT = 21
vXT = 24
vXS = 22
vRES = 32
vAC1 = 48
vT = 64

def MF16(g, d, a, b, c=None): g(f"v_mfma_f32_16x16x32_bf16 {d}, {a}, {b}, {c if c is not None else d}")
def MF32(g, d, a, b, c=None): g(f"v_mfma_f32_32x32x16_bf16 {d}, {a}, {b}, {c if c is not None else d}")

def gelu_pairs(g, regs, tmp):
    n = len(regs)
    t = [tmp + 2 * i for i in range(n)]
    for i, r in enumerate(regs): g(f"v_pk_mul_f32 {vr(t[i],2)}, {vr(r,2)}, {vr(r,2)}")
    for i, r in enumerate(regs): g(f"v_pk_fma_f32 {vr(t[i],2)}, {vr(t[i],2)}, s[{sC1}:{sC1+1}], {vr(vGC0,2)}")
    for i, r in enumerate(regs): g(f"v_pk_mul_f32 {vr(t[i],2)}, {vr(t[i],2)}, {vr(r,2)}")
    for i, r in enumerate(regs): g(f"v_exp_f32 v{t[i]}, v{t[i]}\nv_exp_f32 v{t[i]+1}, v{t[i]+1}")
    for i, r in enumerate(regs): g(f"v_pk_add_f32 {vr(t[i],2)}, {vr(t[i],2)}, 1.0 op_sel_hi:[1,0]")
    for i, r in enumerate(regs): g(f"v_rcp_f32 v{t[i]}, v{t[i]}\nv_rcp_f32 v{t[i]+1}, v{t[i]+1}")
    for i, r in enumerate(regs): g(f"v_pk_mul_f32 {vr(r,2)}, {vr(r,2)}, {vr(t[i],2)}")
vGC0 = 254

def norm_col(g, acc, cs, st, n):
    for k in range(0, n, 2):
        g(f"v_pk_fma_f32 {vr(acc+k,2)}, {vr(cs+k,2)}, {vr(st,2)}, {vr(acc+k,2)} op_sel:[0,0,0] op_sel_hi:[1,0,1] neg_lo:[0,1,0] neg_hi:[0,1,0]")
    for k in range(0, n, 2):
        g(f"v_pk_mul_f32 {vr(acc+k,2)}, {vr(acc+k,2)}, {vr(st,2)} op_sel:[0,1] op_sel_hi:[1,1]")

def publish(g, cnt_sreg_line, cnt_base, tag, first=False):
    g.wait(vm=tag)
    if first:
        lab = g.newlabel("Lrdy"); done = g.newlabel("Lrdyd")
        g(f"s_cmp_lg_u32 s{sW}, 0\ns_cbranch_scc1 {done}")
        g(f"v_mov_b32 v{vT}, 0\ns_mov_b32 s{sSPIN}, {SPINMAX}")
        g.label(lab)
        g(f"s_sub_u32 s{sSPIN}, s{sSPIN}, 1\ns_cbranch_scc1 {done}")
        g(f"buffer_load_dword v{vT+1}, v{vT}, s[{sDBG}:{sDBG+3}], 0 offen sc1\ns_waitcnt vmcnt(0)")
        g(f"v_readfirstlane_b32 s{sT1}, v{vT+1}\ns_nop 3\ns_cmp_eq_u32 s{sT1}, 0\ns_cbranch_scc1 {lab}")
        g.label(done)
    g("s_barrier")
    skip = g.newlabel("Lpub")
    g(f"s_cmp_lg_u32 s{sW}, 0\ns_cbranch_scc1 {skip}")
    g(f"s_add_u32 s{sT1}, s{cnt_sreg_line}, {cnt_base}\ns_lshl_b32 s{sT1}, s{sT1}, 7\ns_add_u32 s{sT1}, s{sT1}, {WS_CNT}")
    g(f"v_mov_b32 v{vPA}, s{sT1}\nv_mov_b32 v{vPA+1}, 1\ns_mov_b64 exec, 1")
    g(f"buffer_atomic_add v{vPA+1}, v{vPA}, s[{sWS}:{sWS+3}], 0 offen sc1")
    g("s_mov_b64 exec, -1")
    g.label(skip)
vPA = 252

def poll(g, addr_v, nlanes, target):
    lab = g.newlabel("Lpoll"); done = g.newlabel("Lpolld")
    g(f"s_mov_b32 s{sSPIN}, {SPINMAX}")
    g.label(lab)
    g(f"s_sub_u32 s{sSPIN}, s{sSPIN}, 1\ns_cbranch_scc1 {done}")
    g(f"buffer_load_dword v{vPA}, v{addr_v}, s[{sWS}:{sWS+3}], 0 offen sc1\ns_waitcnt vmcnt(0)")
    g(f"v_cmp_gt_u32 vcc, {target}, v{vPA}")
    g(f"s_nop 4\ns_cbranch_vccz {done}\ns_sleep 2\ns_branch {lab}")
    g.label(done)
    g.vm = []

def gen(diag=False, stop=None):
    TSNAMES.clear()
    g = G(diag)
    g("s_cmp_ge_u32 s2, 256\ns_cbranch_scc1 Lend")
    for srd, off in ((sX, 0), (sW1, 32), (sWQKV, 8), (sWS, 80), (sDBG, 72), (sW2, 40), (sW3, 48), (sW4, 56), (sWO, 16), (sOUT, 64)):
        g(f"s_load_dwordx2 s[{srd}:{srd+1}], s[0:1], {off}")
    g(f"s_getpc_b64 s[{sCODE}:{sCODE+1}]")
    g.label("Lpc")
    g(f"s_mov_b32 s{sCODE+2}, Lend-Lpc\ns_mov_b32 s{sCODE+3}, 0x20000")
    if diag: g(f"v_mov_b32 v{vTS}, 0\ns_memrealtime s[{sMZ}:{sMZ+1}]")
    g(f"v_and_b32 v{vL}, 63, v0\nv_lshrrev_b32 v{vT}, 6, v0\ns_lshr_b32 s{sT0}, s2, 3\nv_readfirstlane_b32 s{sW}, v{vT}")
    g(f"s_and_b32 s{sT1}, s2, 7\ns_lshl_b32 s{sT1}, s{sT1}, 2\ns_lshr_b32 s{sT2}, s{sT0}, 3\ns_add_u32 s{sRQ}, s{sT1}, s{sT2}")
    g(f"s_and_b32 s{sC8}, s{sT0}, 7\ns_lshr_b32 s{sRB}, s{sRQ}, 1\ns_and_b32 s{sU14}, s{sT0}, 15")
    g(f"s_lshl_b32 s{sT1}, s{sRQ}, 1\ns_add_u32 s{sROT}, s{sC8}, s{sT1}\ns_and_b32 s{sROT}, s{sROT}, 7")
    g(f"s_lshl_b32 s{sW1K}, s{sW}, 10")
    g(f"s_and_b32 s{sT1}, s{sT0}, 1\ns_lshl_b32 s{sT1}, s{sT1}, 2\ns_add_u32 s{sT1}, s{sT1}, s{sW}\ns_lshl_b32 s{sT1}, s{sT1}, 13")
    g(f"v_lshlrev_b32 v{vT}, 7, v{vL}")
    g.vmem(f"buffer_load_dword v{vT+1}, v{vT}, s[{sCODE}:{sCODE+3}], s{sT1} offen", "touch")
    for srd, n in ((sX, 2 << 20), (sW1, 1 << 19), (sWQKV, 3 << 19), (sWS, WS_SIZE), (sDBG, 256), (sW2, 1 << 19), (sW3, 7 << 18), (sW4, 7 << 18), (sWO, 1 << 19), (sOUT, 2 << 20)):
        g(f"s_mov_b32 s{srd+2}, {n}\ns_mov_b32 s{srd+3}, 0x20000")
    for i in range(8):
        g(f"s_add_u32 s{sT1}, s{sROT}, {i}\ns_and_b32 s{sT1}, s{sT1}, 7\ns_lshl_b32 s{sXK+i}, s{sT1}, 7\ns_lshl_b32 s{sW1Ks+i}, s{sT1}, 16\ns_mul_i32 s{sQK+i}, s{sW1Ks+i}, 3")
    t0, t1, t2, t3, t4 = vT + 2, vT + 3, vT + 4, vT + 5, vT + 6
    g(f"v_lshrrev_b32 v{t0}, 3, v{vL}\nv_and_b32 v{t1}, 7, v{vL}")
    g(f"v_lshrrev_b32 v{t2}, 4, v{vL}\nv_xor_b32 v{t2}, v{t2}, v{t1}\nv_lshlrev_b32 v{t2}, 4, v{t2}")
    g(f"v_lshl_add_u32 v{t2}, v{t0}, 11, v{t2}")
    g(f"s_lshr_b32 s{sT1}, s{sW}, 1\ns_lshl_b32 s{sT1}, s{sT1}, 5\ns_and_b32 s{sT2}, s{sW}, 1\ns_add_u32 s{sT1}, s{sT1}, s{sT2}")
    g(f"s_lshl_b32 s{sT3}, s{sRQ}, 6\ns_add_u32 s{sT1}, s{sT1}, s{sT3}\ns_lshl_b32 s{sT1}, s{sT1}, 10")
    g(f"v_add_u32 v{vXd0}, s{sT1}, v{t2}\nv_xor_b32 v{vXd1}, 64, v{vXd0}\nv_add_u32 v{vXd1}, 16384, v{vXd1}")
    g(f"s_add_u32 s{sT1}, s{sT3}, s{sT2}\ns_sub_u32 s{sT1}, s{sT1}, 16\ns_lshl_b32 s{sT1}, s{sT1}, 10\ns_lshl_b32 s{sT3}, s{sT2}, 6")
    g(f"v_xor_b32 v{vXh}, s{sT3}, v{t2}\nv_add_u32 v{vXh}, s{sT1}, v{vXh}")
    g(f"v_lshlrev_b32 v{t3}, 1, v{t0}\nv_and_b32 v{t3}, 4, v{t3}\nv_xor_b32 v{t3}, v{t3}, v{t1}\ns_lshl_b32 s{sT2}, s{sT2}, 1\nv_xor_b32 v{t3}, s{sT2}, v{t3}\nv_lshlrev_b32 v{t3}, 4, v{t3}")
    g(f"s_lshl_b32 s{sT1}, s{sW}, 3\nv_add_u32 v{t4}, s{sT1}, v{t0}")
    g(f"s_lshl_b32 s{sT1}, s{sC8}, 7\nv_add_u32 v{t0}, s{sT1}, v{t3}")
    g(f"v_lshl_add_u32 v{vW1024}, v{t4}, 10, v{t0}")
    g(f"v_mul_u32_u24 v{vW3072}, 3072, v{t4}\nv_add_u32 v{vW3072}, v{vW3072}, v{t0}")
    g(f"s_lshl_b32 s{sT1}, s{sU14}, 8\nv_add_u32 v{t0}, s{sT1}, v{t3}\nv_mul_u32_u24 v{vW3584}, 3584, v{t4}\nv_add_u32 v{vW3584}, v{vW3584}, v{t0}")
    g(f"s_lshl_b32 s{sT3}, s{sW}, 14")
    g(f"s_mov_b32 s{sMZ+2}, s{sT3}")
    g("s_waitcnt lgkmcnt(0)")
    if diag: g(f"v_writelane_b32 v{vTS}, s{sMZ}, 63")
    g.ts("start")
    g(f"s_or_b32 s{sT1}, s2, s{sW}\ns_cmp_lg_u32 s{sT1}, 0\ns_cbranch_scc1 Lnz")
    g(f"v_lshlrev_b32 v{t0}, 7, v{vL}\nv_add_u32 v{t0}, {WS_CNT}, v{t0}\nv_mov_b32 v{t1}, 0\ns_mov_b32 s{sT1}, 8192")
    g(f"buffer_store_dword v{t1}, v{t0}, s[{sWS}:{sWS+3}], 0 offen sc1\nbuffer_store_dword v{t1}, v{t0}, s[{sWS}:{sWS+3}], s{sT1} offen sc1")
    g.label("Lnz")
    W1L = lambda i: R + 8192 * (i + 1)
    for i in range(8):
        g.dma(sX, vXd0, (sXK + i, 0), (sMZ + 2, i * 2048), f"c{i}")
        g.dma(sX, vXd1, (sXK + i, 0), (sMZ + 2, i * 2048 + 1024), f"c{i}")
        for t in range(2):
            g.dma(sW1, vW1024, (sW1Ks + i, t * 32768), W1L(i) + t * 4096, f"c{i}")
    g(f"s_lshr_b32 s{sT1}, s{sW}, 1\ns_lshl_b32 s{sT2}, s{sT1}, 13\ns_and_b32 s{sT3}, s{sW}, 1\ns_lshl_b32 s{sT3}, s{sT3}, 10\ns_add_u32 s{sMZ+3}, s{sT2}, s{sT3}")
    g(f"s_lshl_b32 s{sT1}, s{sT1}, 9")
    for q in range(4):
        g(f"s_xor_b32 s{sT2}, s{sXK+q}, s{sT1}")
        g.dma(sX, vXh, (sT2, 0), (sMZ + 3, 65536 + q * 2048), "halo")
    g(f"v_lshlrev_b32 v{vL16}, 4, v{vL}")
    for i in range(4): g(f"v_mov_b32 v{vONE+i}, 0x3f803f80")
    g(f"v_mov_b32 v{vGC0}, {fl(GC0)}\nv_mov_b32 v{vGC0+1}, {fl(GC0)}\ns_mov_b32 s{sC1}, {fl(GC1)}\ns_mov_b32 s{sC1+1}, {fl(GC1)}")
    c_, g_, e_, q_ = vT + 8, vT + 9, vT + 10, vT + 11
    g(f"v_and_b32 v{c_}, 15, v{vL}\nv_lshrrev_b32 v{g_}, 4, v{vL}\nv_bfe_u32 v{e_}, v{vL}, 2, 2\nv_and_b32 v{q_}, 3, v{vL}")
    g(f"v_lshrrev_b32 v{t0}, 1, v{c_}\nv_xor_b32 v{t0}, v{t0}, v{g_}\nv_lshlrev_b32 v{t0}, 4, v{t0}\nv_lshl_add_u32 v{vXr0}, v{c_}, 7, v{t0}")
    g(f"v_xor_b32 v{vXr1}, 64, v{vXr0}\nv_add_u32 v{vXh0}, 65536, v{vXr0}\nv_add_u32 v{vXh1}, 65536, v{vXr1}")
    g(f"v_lshrrev_b32 v{t0}, 1, v{q_}\ns_lshl_b32 s{sT1}, s{sW}, 1\nv_add_u32 v{t0}, s{sT1}, v{t0}")
    g(f"v_lshlrev_b32 v{t1}, 1, v{e_}\nv_and_b32 v{t1}, 4, v{t1}\nv_and_b32 v{t2}, 1, v{g_}\nv_lshl_add_u32 v{t2}, v{t2}, 1, v{t1}\nv_xor_b32 v{t0}, v{t0}, v{t2}")
    g(f"v_lshl_add_u32 v{t2}, v{g_}, 3, v{e_}\nv_lshlrev_b32 v{t2}, 7, v{t2}\nv_lshl_add_u32 v{t0}, v{t0}, 4, v{t2}\nv_and_b32 v{t2}, 1, v{q_}\nv_lshl_add_u32 v{t0}, v{t2}, 3, v{t0}")
    g(f"v_add_u32 v{vTR16a}, {R}, v{t0}\nv_add_u32 v{vTR16b}, {R+36864}, v{t0}")
    g(f"v_and_b32 v{t0}, 1, v{q_}\nv_and_b32 v{t2}, 1, v{g_}\nv_lshl_add_u32 v{t0}, v{t0}, 1, v{t2}")
    g(f"v_and_b32 v{t2}, 2, v{g_}\nv_add_u32 v{t3}, v{t2}, v{t1}\nv_xor_b32 v{t0}, v{t0}, v{t3}")
    g(f"v_lshl_add_u32 v{t2}, v{t2}, 2, v{e_}\nv_lshlrev_b32 v{t2}, 7, v{t2}\nv_lshl_add_u32 v{t0}, v{t0}, 4, v{t2}\nv_lshrrev_b32 v{t2}, 1, v{q_}\nv_lshl_add_u32 v{vLP32}, v{t2}, 3, v{t0}")
    g(f"s_lshr_b32 s{sT1}, s{sW}, 1\ns_lshl_b32 s{sT1}, s{sT1}, 10\nv_add_u32 v{vACT}, s{sT1}, v{vL16}")
    g(f"s_mov_b32 s{sM1}, 0x22222222\ns_mov_b32 s{sM1+1}, 0x22222222\ns_mov_b32 s{sM2}, 0x44444444\ns_mov_b32 s{sM2+1}, 0x44444444")
    g(f"s_mov_b32 s{sM3}, 0x88888888\ns_mov_b32 s{sM3+1}, 0x88888888\ns_mov_b32 s{sMD}, 0x00F0000F\ns_mov_b32 s{sMD+1}, 0xF0000F00")

    def tr16(dst, ldsoff, tag):
        o = ldsoff - R
        reg, o = (vTR16a, o) if o < 36864 else (vTR16b, o - 36864)
        for e in range(2):
            g.ds(f"ds_read_b64_tr_b16 {ar(dst+2*e,2)}, v{reg} offset:{o+512*e}", tag)

    def stats_finalize(gr, sm, tmp, tbl_block_sreg=None, tbl_block_imm=0):
        q0, mean, var, rstd = tmp, tmp + 1, tmp + 2, tmp + 3
        g(f"v_cndmask_b32 v{q0}, v{gr}, v{gr+1}, s[{sM1}:{sM1+1}]\nv_cndmask_b32 v{q0}, v{q0}, v{gr+2}, s[{sM2}:{sM2+1}]\nv_cndmask_b32 v{q0}, v{q0}, v{gr+3}, s[{sM3}:{sM3+1}]")
        g(f"v_mul_f32 v{mean}, {fl(1/512)}, v{sm}\nv_mul_f32 v{q0}, {fl(1/512)}, v{q0}\nv_fma_f32 v{var}, -v{mean}, v{mean}, v{q0}\nv_max_f32 v{var}, 0, v{var}")
        g(f"v_add_f32 v{rstd}, {fl(EPS)}, v{var}\nv_rsq_f32 v{rstd}, v{rstd}")
        g(f"v_mul_f32 v{var}, v{var}, v{rstd}\nv_mul_f32 v{var}, v{var}, v{rstd}\nv_add_f32 v{var}, {fl(EPS)}, v{var}\nv_rsq_f32 v{var}, v{var}\nv_mul_f32 v{var}, v{var}, v{rstd}")
        g(f"v_and_b32 v{q0}, 15, v{vL}\nv_lshlrev_b32 v{q0}, 2, v{q0}")
        if tbl_block_sreg is not None:
            g(f"s_lshl_b32 s{sT1}, s{tbl_block_sreg}, 6\ns_add_u32 s{sT1}, s{sT1}, {TBL}\nv_add_u32 v{q0}, s{sT1}, v{q0}")
        else:
            g(f"v_add_u32 v{q0}, {TBL + tbl_block_imm*64}, v{q0}")
        g(f"s_mov_b64 exec, s[{sMD}:{sMD+1}]")
        g.ds(f"ds_write_b32 v{q0}, v{mean} offset:{T_MEAN}"); g.ds(f"ds_write_b32 v{q0}, v{rstd} offset:{T_RSTD}"); g.ds(f"ds_write_b32 v{q0}, v{var} offset:{T_A2}")
        g("s_mov_b64 exec, -1")

    vXp = vT + 16
    for i in range(4):
        g(f"s_xor_b32 s{sT1}, s{sW}, {i}\ns_lshl_b32 s{sT1}, s{sT1}, 14\nv_add_u32 v{vXp+2*i}, s{sT1}, v{vXr0}\nv_add_u32 v{vXp+2*i+1}, s{sT1}, v{vXr1}")
    hA = vT + 24
    csA, grA, smA = hA + 16, hA + 20, hA + 24
    QSLOT = lambda j: R + 12288 * (j % 6)
    def qkv_dma(j):
        for s in range(3):
            g.dma(sWQKV, vW3072, (sQK + (j >> 1), (j & 1) * 32 * 3072 + s * 1024), QSLOT(j) + s * 4096, f"q{j}")
    W2L = lambda u: R + (49152 + 4096 * u) % 73728
    def p1a_reads(ks):
        fb = (ks & 1) * 20
        tr16(fb, W1L(ks >> 1) + (ks & 1) * 4096, f"r{ks}")
        for i in range(4):
            g.ds(f"ds_read_b128 {ar(fb+4+4*i,4)}, v{vXp+2*i+(ks&1)} offset:{(ks>>1)*2048}", f"r{ks}")
    free_after = {1: [0], 2: [1], 4: [2], 5: [3], 7: [4]}
    for i in range(8):
        g.wait(vm=f"c{i}", lg="all")
        g("s_barrier")
        if i == 0:
            g.ts("c0 landed")
            g(f"s_or_b32 s{sT1}, s2, s{sW}\ns_cmp_lg_u32 s{sT1}, 0\ns_cbranch_scc1 Lnr")
            g(f"v_mov_b32 v{vPA}, 0\nv_mov_b32 v{vPA+1}, 1\ns_mov_b64 exec, 1\nbuffer_store_dword v{vPA+1}, v{vPA}, s[{sDBG}:{sDBG+3}], 0 offen sc1\ns_mov_b64 exec, -1")
            g.label("Lnr")
        p1a_reads(2 * i); p1a_reads(2 * i + 1)
        for j in free_after.get(i, []): qkv_dma(j)
        for ks in (2 * i, 2 * i + 1):
            fb = (ks & 1) * 20
            g.wait(lg=f"r{ks}")
            z = "0" if ks == 0 else None
            for b in range(4): MF16(g, vr(hA + 4 * b, 4), ar(fb, 4), ar(fb + 4 + 4 * b, 4), z)
            MF16(g, vr(csA, 4), ar(fb, 4), vr(vONE, 4), z)
            MF16(g, vr(grA, 4), ar(fb + 4, 4), ar(fb + 4, 4), z)
            MF16(g, vr(smA, 4), vr(vONE, 4), ar(fb + 4, 4), z)
    g.ts("p1a mfma done")
    tmp = hA + 28
    stats_finalize(grA, smA, tmp, tbl_block_sreg=sW)
    vGA = tmp + 4
    def act_store_addr(dst, P, natural, shift, base):
        a0, a1, a2 = tmp + 8, tmp + 9, tmp + 10
        g(f"v_bfe_u32 v{a0}, v{vL}, 4, 1\nv_add_u32 v{a0}, {2*P}, v{a0}")
        if not natural: g(f"v_xor_b32 v{a0}, s{sW}, v{a0}")
        g(f"v_and_b32 v{a1}, 1, v{a0}\nv_lshrrev_b32 v{a0}, 1, v{a0}\nv_lshl_add_u32 v{a0}, v{a0}, 5, v{a1}\nv_and_b32 v{a1}, 15, v{vL}\nv_lshl_add_u32 v{a0}, v{a1}, 1, v{a0}")
        g(f"s_lshl_b32 s{sT1}, s{sRQ}, 6")
        if shift:
            g(f"s_add_u32 s{sT1}, s{sT1}, s{sT3}")
        g(f"v_add_u32 v{a0}, s{sT1}, v{a0}")
        if shift:
            g(f"v_cmp_gt_u32 s[{sMZ+2*P}:{sMZ+2*P+1}], s{sT2}, v{a0}\nv_and_b32 v{a0}, 2047, v{a0}")
        g(f"v_lshrrev_b32 v{a1}, 5, v{a0}\nv_lshlrev_b32 v{a1}, 15, v{a1}\nv_and_b32 v{a2}, 1, v{a0}\nv_lshl_add_u32 v{a1}, v{a2}, 8, v{a1}\nv_bfe_u32 v{a2}, v{a0}, 1, 4\nv_lshl_add_u32 v{a1}, v{a2}, 4, v{a1}")
        g(f"v_lshrrev_b32 v{a2}, 5, v{vL}\nv_lshl_add_u32 v{a1}, v{a2}, 9, v{a1}")
        g(f"s_lshl_b32 s{sT1}, s{sC8}, 2\ns_add_u32 s{sT1}, s{sT1}, s{sW}\ns_lshl_b32 s{sT1}, s{sT1}, 10\ns_add_u32 s{sT1}, s{sT1}, {base}\nv_add_u32 v{dst}, s{sT1}, v{a1}")
    g(f"s_lshr_b32 s{sT3}, s{sC8}, 2\ns_add_u32 s{sT3}, s{sT3}, 1\ns_sub_u32 s{sT2}, 0, s{sT3}\ns_bitcmp1_b32 s{sC8}, 1\ns_cselect_b32 s{sT3}, s{sT2}, s{sT3}\ns_movk_i32 s{sT2}, 2048")
    act_store_addr(vGA, 0, False, True, WS_G); act_store_addr(vGA + 1, 1, False, True, WS_G)
    g.wait(lg="all"); g("s_barrier")
    qkv_dma(5)
    vST = tmp + 12
    for i in range(4):
        g(f"s_xor_b32 s{sT1}, s{sW}, {i}\ns_lshl_b32 s{sT1}, s{sT1}, 6\ns_add_u32 s{sT1}, s{sT1}, {TBL}\nv_and_b32 v{tmp}, 15, v{vL}\nv_lshlrev_b32 v{tmp}, 2, v{tmp}\nv_add_u32 v{tmp}, s{sT1}, v{tmp}")
        g.ds(f"ds_read2_b32 {vr(vST+2*i,2)}, v{tmp} offset0:{T_MEAN//4} offset1:{T_A2//4}")
    a0, a1, a2 = tmp + 8, tmp + 9, tmp + 10
    g(f"v_and_b32 v{a0}, 15, v{vL}\nv_lshrrev_b32 v{a1}, 1, v{a0}\nv_lshrrev_b32 v{a2}, 5, v{vL}\nv_lshlrev_b32 v{a2}, 1, v{a2}\ns_and_b32 s{sT1}, s{sW}, 2\ns_lshl_b32 s{sT1}, s{sT1}, 1\nv_add_u32 v{a2}, s{sT1}, v{a2}")
    g(f"v_xor_b32 v{a1}, v{a1}, v{a2}\nv_lshlrev_b32 v{a1}, 4, v{a1}\nv_lshl_add_u32 v{a1}, v{a0}, 7, v{a1}\nv_bfe_u32 v{a2}, v{vL}, 4, 1\nv_lshl_add_u32 v{a1}, v{a2}, 14, v{a1}")
    g(f"s_sub_u32 s{sT1}, s{sC8}, s{sROT}\ns_and_b32 s{sT1}, s{sT1}, 7\ns_lshl_b32 s{sT1}, s{sT1}, 11\ns_and_b32 s{sT2}, s{sW}, 1\ns_lshl_b32 s{sT3}, s{sT2}, 15\ns_add_u32 s{sT1}, s{sT1}, s{sT3}\nv_add_u32 v{a1}, s{sT1}, v{a1}\nv_xor_b32 v{a2}, 16, v{a1}")
    g.ds(f"ds_read_b128 {vr(vXT,4)}, v{a1}"); g.ds(f"ds_read_b128 {vr(vXT+4,4)}, v{a2}")
    g(f"v_and_b32 v{a0}, 31, v{vL}\nv_lshlrev_b32 v{a0}, 2, v{a0}\ns_lshl_b32 s{sT2}, s{sT2}, 7\ns_add_u32 s{sT2}, s{sT2}, {TBL}\nv_add_u32 v{a0}, s{sT2}, v{a0}")
    g.ds(f"ds_read2_b32 {vr(vXS,2)}, v{a0} offset0:{T_MEAN//4} offset1:{T_RSTD//4}")
    g.wait(lg="all")
    for i in range(4): norm_col(g, hA + 4 * i, csA, vST + 2 * i, 4)
    gt = vST + 8
    gelu_pairs(g, [hA + 2 * k for k in range(8)], gt)
    pk = gt
    for k in range(8): g(f"v_cvt_pk_bf16_f32 v{pk+k}, v{hA+2*k}, v{hA+2*k+1}")
    for P in range(2):
        g(f"v_permlane16_swap_b32 v{pk+4*P}, v{pk+4*P+2}\nv_permlane16_swap_b32 v{pk+4*P+1}, v{pk+4*P+3}")
    for P in range(2):
        for k in range(4): g(f"v_cndmask_b32 v{pk+4*P+k}, 0, v{pk+4*P+k}, s[{sMZ+2*P}:{sMZ+2*P+1}]")
        g.vmem(f"buffer_store_dwordx4 {vr(pk+4*P,4)}, v{vGA+P}, s[{sWS}:{sWS+3}], 0 offen sc1", "stG")
    g.ts("h stored")
    publish(g, sRQ, CNT_H, "stG", first=True)
    g.ts("h published")
    for ks in range(16):
        g.ds(f"ds_read_b128 {ar(4*ks,4)}, v{vXh0+(ks&1)} offset:{(ks>>1)*2048}", f"h{ks}")
        if ks == 7 or ks == 15:
            for k2 in range(ks - 7, ks + 1):
                g.wait(lg=f"h{k2}")
                z = "0" if k2 == 0 else None
                MF16(g, vr(grA, 4), ar(4 * k2, 4), ar(4 * k2, 4), z)
                MF16(g, vr(smA, 4), vr(vONE, 4), ar(4 * k2, 4), z)
    stats_finalize(grA, smA, tmp, tbl_block_imm=4)
    qA = vT; kA = qA + 16; vA = kA + 20; cq = vA + 20; ck = cq + 4; cv = ck + 4
    def qkv_reads(j):
        fb = (j & 1) * 32
        for s in range(3): tr16(fb + 4 * s, QSLOT(j) + s * 4096, f"r{j}")
        for b in range(4):
            g.ds(f"ds_read_b128 {ar(fb+12+4*b,4)}, v{vXr0+(j&1)} offset:{b*16384+(j>>1)*2048}", f"r{j}")
        g.ds(f"ds_read_b128 {ar(fb+28,4)}, v{vXh0+(j&1)} offset:{(j>>1)*2048}", f"r{j}")
    def qkv_mfma(j):
        fb = (j & 1) * 32; z = "0" if j == 0 else None
        X = lambda b: ar(fb + 12 + 4 * b, 4)
        for b in range(4): MF16(g, vr(qA + 4 * b, 4), ar(fb, 4), X(b), z)
        for b in range(5): MF16(g, vr(kA + 4 * b, 4), ar(fb + 4, 4), X(b), z)
        for b in range(5): MF16(g, vr(vA + 4 * b, 4), X(b), ar(fb + 8, 4), z)
        MF16(g, vr(cq, 4), ar(fb, 4), vr(vONE, 4), z)
        MF16(g, vr(ck, 4), ar(fb + 4, 4), vr(vONE, 4), z)
        MF16(g, vr(cv, 4), vr(vONE, 4), ar(fb + 8, 4), z)
    def w2_dma(u): g.dma(sW2, vW1024, (None, u * 32768), W2L(u), "w2")
    for j in range(17):
        if j < 16:
            g.wait(vm=f"q{j}", lg="all"); g("s_barrier")
            qkv_reads(j)
        else:
            g.wait(lg="all"); g("s_barrier")
        if j >= 1:
            nxt = j + 5
            if nxt < 16: qkv_dma(nxt)
            else:
                for u in range(3 * (nxt - 16), min(16, 3 * (nxt - 16) + 3)): w2_dma(u)
            qkv_mfma(j - 1)
    g.ts("qkv mfma done")
    lab_nw3 = "Lnw3a"
    g(f"s_cmp_ge_u32 s{sU14}, 14\ns_cbranch_scc1 {lab_nw3}")
    for u in range(16): g.dma(sW3, vW3584, (None, u * 32 * 3584), u * 4096, "w3a")
    g.label(lab_nw3)
    tp = cv + 4
    vPL = tp
    g(f"v_min_u32 v{vPL}, 2, v{vL}\ns_add_u32 s{sT1}, s{sRQ}, 31\nv_add_u32 v{vPL}, s{sT1}, v{vPL}\nv_and_b32 v{vPL}, 31, v{vPL}\nv_lshlrev_b32 v{vPL}, 7, v{vPL}\nv_add_u32 v{vPL}, {WS_CNT + CNT_H*128}, v{vPL}")
    poll(g, vPL, 3, 8)
    g.ts("h visible")
    g("s_barrier")
    sAB = sMZ
    g(f"s_lshl_b32 s{sAB}, s{sRQ}, 1\ns_and_b32 s{sT1}, s{sW}, 1\ns_add_u32 s{sAB}, s{sAB}, s{sT1}\ns_lshl_b32 s{sAB+1}, s{sAB}, 15\ns_mul_i32 s{sAB+2}, s{sAB}, 114688")
    def act_load(dst, sbase, imm, tprime, tag):
        if tprime % 2 == 0: g(f"s_add_u32 s{sT3}, s{sbase}, {imm + tprime*2048}")
        g.vmem(f"buffer_load_dwordx4 {ar(dst,4)}, v{vACT}, s[{sWS}:{sWS+3}], s{sT3} offen offset:{(tprime%2)*2048} sc1", tag)
    for t in range(16): act_load(4 * t, sAB + 1, WS_G, t, f"g{t}")
    vT2 = tp + 2
    g(f"s_lshr_b32 s{sT1}, s{sW}, 1\ns_lshl_b32 s{sT2}, s{sT1}, 6\ns_lshl_b32 s{sT1}, s{sT1}, 11\nv_xor_b32 v{vT2}, s{sT2}, v{vLP32}\nv_add_u32 v{vT2}, s{sT1}, v{vT2}\nv_xor_b32 v{vT2+1}, 64, v{vT2}")
    for k in (1, 2): g(f"v_add_u32 v{vT2+2*k}, {61440*k}, v{vT2}\nv_add_u32 v{vT2+2*k+1}, {61440*k}, v{vT2+1}")
    vWF = vT2 + 6
    def t2_reads(ldsoff, slot, tag):
        k = ldsoff // 61440; o = ldsoff - 61440 * k
        for f in range(2):
            for e in range(2):
                g.ds(f"ds_read_b64_tr_b16 {vr(vWF+8*slot+4*f+2*e,2)}, v{vT2+2*k+f} offset:{o+512*e}", tag)
    def t2_mfma(slot, act, first=False):
        MF32(g, vr(vRES, 16), vr(vWF + 8 * slot, 4), act, "0" if first else None)
        MF32(g, vr(vAC1, 16), vr(vWF + 8 * slot + 4, 4), act, "0" if first else None)
    t2_reads(W2L(0), 0, "w0")
    for t in range(16):
        if t + 1 < 16: t2_reads(W2L(t + 1), (t + 1) & 1, f"w{t+1}")
        g.wait(vm=f"g{t}", lg=f"w{t}")
        t2_mfma(t & 1, ar(4 * t, 4), t == 0)
    g.ts("p2 mfma done")
    SCR = 65536
    vRB = vWF + 16
    def reduce_pair(scr):
        g(f"s_lshl_b32 s{sT1}, s{sW}, 12\ns_add_u32 s{sT1}, s{sT1}, {scr}\nv_add_u32 v{tp}, s{sT1}, v{vL16}\nv_xor_b32 v{tp+1}, 8192, v{tp}")
        for q in range(4): g.ds(f"ds_write_b128 v{tp}, {vr(vAC1+4*q,4)} offset:{q*1024}")
        g.wait(lg="all"); g("s_barrier")
        for q in range(4): g.ds(f"ds_read_b128 {vr(vRB+4*q,4)}, v{tp+1} offset:{q*1024}")
        g.wait(lg="all")
        for k in range(0, 16, 2): g(f"v_pk_add_f32 {vr(vRES+k,2)}, {vr(vRES+k,2)}, {vr(vRB+k,2)}")
    reduce_pair(SCR)
    g(f"s_cmp_ge_u32 s{sU14}, 14\ns_cbranch_scc1 Lnw3b")
    for u in range(16): g.dma(sW3, vW3584, (None, u * 32 * 3584 + 128), R + u * 4096, "w3b")
    g.label("Lnw3b")
    for k in range(8):
        g(f"v_lshlrev_b32 v{vRB+2*k}, 16, v{vXT+k}\nv_and_b32 v{vRB+2*k+1}, 0xffff0000, v{vXT+k}")
    for k in range(0, 16, 2):
        g(f"v_pk_add_f32 {vr(vAC1+k,2)}, {vr(vRB+k,2)}, {vr(vXS,2)} op_sel:[0,0] op_sel_hi:[1,0] neg_lo:[0,1] neg_hi:[0,1]")
    for k in range(0, 16, 2):
        g(f"v_pk_fma_f32 {vr(vAC1+k,2)}, {vr(vAC1+k,2)}, {vr(vXS,2)}, {vr(vRES+k,2)} op_sel:[0,1,0] op_sel_hi:[1,1,1]")
    pk = vRB + 16
    for k in range(8): g(f"v_cvt_pk_bf16_f32 v{pk+k}, v{vAC1+2*k}, v{vAC1+2*k+1}")
    sa = pk + 8
    g(f"v_and_b32 v{sa}, 31, v{vL}\nv_lshlrev_b32 v{sa}, 4, v{sa}\nv_lshrrev_b32 v{sa+1}, 5, v{vL}\nv_lshl_add_u32 v{sa}, v{sa+1}, 10, v{sa}")
    g(f"s_lshl_b32 s{sT1}, s{sC8}, 1\ns_lshr_b32 s{sT2}, s{sW}, 1\ns_add_u32 s{sT1}, s{sT1}, s{sT2}\ns_lshl_b32 s{sT2}, s{sT1}, 11\ns_add_u32 s{sT2}, s{sT2}, s{sAB+1}\ns_add_u32 s{sT2}, s{sT2}, {WS_X1}")
    for u in range(2): g.vmem(f"buffer_store_dwordx4 {vr(pk+4*u,4)}, v{sa}, s[{sWS}:{sWS+3}], s{sT2} offen offset:{512*u} sc1", "stX")
    s1, s2 = sa + 2, sa + 4
    g(f"v_pk_add_f32 {vr(s1,2)}, {vr(vAC1,2)}, {vr(vAC1+2,2)}\nv_pk_mul_f32 {vr(s2,2)}, {vr(vAC1,2)}, {vr(vAC1,2)}")
    for k in range(2, 16, 2):
        if k > 2: g(f"v_pk_add_f32 {vr(s1,2)}, {vr(s1,2)}, {vr(vAC1+k,2)}")
        g(f"v_pk_fma_f32 {vr(s2,2)}, {vr(vAC1+k,2)}, {vr(vAC1+k,2)}, {vr(s2,2)}")
    g(f"v_add_f32 v{s1}, v{s1}, v{s1+1}\nv_add_f32 v{s2}, v{s2}, v{s2+1}\nv_permlane32_swap_b32 v{s1}, v{s2}\nv_add_f32 v{s1}, v{s1}, v{s2}")
    g(f"v_lshlrev_b32 v{s2}, 2, v{vL}\ns_lshl_b32 s{sT2}, s{sAB}, 4\ns_add_u32 s{sT2}, s{sT2}, s{sT1}\ns_lshl_b32 s{sT2}, s{sT2}, 8\ns_add_u32 s{sT2}, s{sT2}, {WS_ST}")
    g.vmem(f"buffer_store_dword v{s1}, v{s2}, s[{sWS}:{sWS+3}], s{sT2} offen sc1", "stX")
    for k in range(0, 16, 2): g(f"v_pk_add_f32 {vr(vRES+k,2)}, {vr(vAC1+k,2)}, {vr(vRB+k,2)}")
    g.vm = ["stX"]
    g.ts("x1 stored")
    publish(g, sRB, CNT_X, "stX")
    g.ts("x1 published")
    at = vWF
    vSC = at
    vSRm = vSC + 10 + 2
    vSRr = vSRm + 20
    ad = vSRr + 20
    g(f"v_and_b32 v{ad}, 15, v{vL}\nv_lshlrev_b32 v{ad}, 2, v{ad}\nv_add_u32 v{ad}, {TBL}, v{ad}\nv_lshrrev_b32 v{ad+1}, 4, v{vL}\nv_lshlrev_b32 v{ad+1}, 4, v{ad+1}\nv_add_u32 v{ad+1}, {TBL}, v{ad+1}")
    for b in range(5): g.ds(f"ds_read2_b32 {vr(vSC+2*b,2)}, v{ad} offset0:{T_MEAN//4+16*b} offset1:{T_RSTD//4+16*b}")
    for b in range(5):
        g.ds(f"ds_read_b128 {vr(vSRm+4*b,4)}, v{ad+1} offset:{T_MEAN+64*b}"); g.ds(f"ds_read_b128 {vr(vSRr+4*b,4)}, v{ad+1} offset:{T_RSTD+64*b}")
    bi = ad + 2
    am = bi + 16
    NEG = fl(-1e30)
    m0_, m1_, m2_ = am + 8, am + 9, am + 10
    g(f"v_and_b32 v{m0_}, 15, v{vL}\nv_lshrrev_b32 v{m1_}, 4, v{vL}\nv_lshlrev_b32 v{m1_}, 2, v{m1_}\nv_sub_u32 v{m0_}, v{m0_}, v{m1_}")
    g(f"v_mov_b32 v{m2_}, {NEG}\ns_cmp_eq_u32 s{sRQ}, 0\ns_cselect_b32 s{sT3}, 0, -1")
    for r in range(4):
        g(f"v_subrev_u32 v{am+11}, {r}, v{m0_}")
        g(f"v_cmp_gt_u32 vcc, 8, v{am+11}\nv_cndmask_b32 v{bi+r}, v{m2_}, 0, vcc")
        g(f"v_cmp_gt_i32 vcc, -8, v{am+11}\nv_cndmask_b32 v{bi+4+r}, v{m2_}, 0, vcc")
        g(f"s_and_b32 vcc_lo, vcc_lo, s{sT3}\ns_and_b32 vcc_hi, vcc_hi, s{sT3}\ns_nop 1\nv_cndmask_b32 v{bi+12+r}, v{m2_}, 0, vcc")
        g(f"v_cmp_gt_i32 vcc, 0, v{am+11}\ns_nop 1\ns_and_b32 vcc_lo, vcc_lo, s{sT3}\ns_mov_b32 vcc_hi, 0\ns_nop 1\nv_cndmask_b32 v{bi+8+r}, v{m2_}, 0, vcc")
    for t in range(4):
        for k in range(2):
            g(f"v_ashrrev_i32 v{m0_}, 31, v{bi+4*t+2*k}\nv_ashrrev_i32 v{m1_}, 31, v{bi+4*t+2*k+1}\nv_and_b32 v{m0_}, 0xffff, v{m0_}\nv_and_b32 v{m1_}, 0xffff0000, v{m1_}\nv_or_b32 v{m0_}, v{m0_}, v{m1_}\nv_not_b32 v{am+2*t+k}, v{m0_}")
    g.wait(lg="all")
    for b in range(5): norm_col(g, kA + 4 * b, ck, vSC + 2 * b, 4)
    for b in range(4): g(f"v_mul_f32 v{vSC+2*b+1}, {fl(QSCALE)}, v{vSC+2*b+1}")
    for b in range(4): norm_col(g, qA + 4 * b, cq, vSC + 2 * b, 4)
    for b in range(5):
        for k in (0, 2):
            g(f"v_pk_fma_f32 {vr(vA+4*b+k,2)}, {vr(vSRm+4*b+k,2)}, {vr(cv,2)}, {vr(vA+4*b+k,2)} neg_lo:[1,0,0] neg_hi:[1,0,0]")
        for k in (0, 2):
            g(f"v_pk_mul_f32 {vr(vA+4*b+k,2)}, {vr(vA+4*b+k,2)}, {vr(vSRr+4*b+k,2)}")
    qP = vSRm; kP = qP + 8; vP = kP + 10
    for b in range(4):
        for k in range(2): g(f"v_cvt_pk_bf16_f32 v{qP+2*b+k}, v{qA+4*b+2*k}, v{qA+4*b+2*k+1}")
    for b in range(5):
        for k in range(2): g(f"v_cvt_pk_bf16_f32 v{kP+2*b+k}, v{kA+4*b+2*k}, v{kA+4*b+2*k+1}")
    for p in range(2):
        for n, b in enumerate((4, p, 2 + p)):
            for k in range(2): g(f"v_cvt_pk_bf16_f32 v{vP+6*p+2*n+k}, v{vA+4*b+2*k}, v{vA+4*b+2*k+1}")
    Sc = qA; Sp = qA + 16; PP = qA + 32; Oa = qA + 48; Dn = Sc
    for b in range(4):
        tg, p = b >> 1, b & 1
        pb = 4 if tg == 0 else p
        pbias = (bi + 8 + 4 * p) if tg == 0 else bi + 4
        g(f"v_mfma_f32_16x16x16_bf16 {vr(Sc+4*b,4)}, {vr(kP+2*b,2)}, {vr(qP+2*b,2)}, {vr(bi,4)}")
        g(f"v_mfma_f32_16x16x16_bf16 {vr(Sp+4*b,4)}, {vr(kP+2*pb,2)}, {vr(qP+2*b,2)}, {vr(pbias,4)}")
    for b in range(4):
        for r in range(4): g(f"v_max_f32 v{Sc+4*b+r}, v{Sc+4*b+r}, v{Sp+4*b+r}")
    mx = Sp
    for b in range(4):
        g(f"v_max3_f32 v{mx+4*b}, v{Sc+4*b}, v{Sc+4*b+1}, v{Sc+4*b+2}\nv_max_f32 v{mx+4*b}, v{mx+4*b}, v{Sc+4*b+3}\nv_mov_b32 v{mx+4*b+1}, v{mx+4*b}")
    for b in range(4): g(f"v_permlane16_swap_b32 v{mx+4*b}, v{mx+4*b+1}")
    for b in range(4): g(f"v_max_f32 v{mx+4*b}, v{mx+4*b}, v{mx+4*b+1}\nv_mov_b32 v{mx+4*b+1}, v{mx+4*b}")
    for b in range(4): g(f"v_permlane32_swap_b32 v{mx+4*b}, v{mx+4*b+1}")
    for b in range(4): g(f"v_max_f32 v{mx+4*b}, v{mx+4*b}, v{mx+4*b+1}")
    for b in range(4):
        for k in (0, 2): g(f"v_pk_add_f32 {vr(Sc+4*b+k,2)}, {vr(Sc+4*b+k,2)}, {vr(mx+4*b,2)} op_sel:[0,0] op_sel_hi:[1,0] neg_lo:[0,1] neg_hi:[0,1]")
    for b in range(4):
        for r in range(4): g(f"v_exp_f32 v{Sc+4*b+r}, v{Sc+4*b+r}")
    for b in range(4):
        tg, p = b >> 1, b & 1
        pm = (am + 4 + 2 * p) if tg == 0 else am + 2
        for k in range(2): g(f"v_cvt_pk_bf16_f32 v{PP+4*b+2+k}, v{Sc+4*b+2*k}, v{Sc+4*b+2*k+1}")
        for k in range(2): g(f"v_and_b32 v{PP+4*b+k}, v{pm+k}, v{PP+4*b+2+k}")
        for k in range(2): g(f"v_and_b32 v{PP+4*b+2+k}, v{am+k}, v{PP+4*b+2+k}")
    for b in range(4):
        tg, p = b >> 1, b & 1
        MF16(g, vr(Oa + 4 * b, 4), vr(vP + 6 * p + 2 * tg, 4), vr(PP + 4 * b, 4), "0")
        MF16(g, vr(Dn + 4 * b, 4), vr(vONE, 4), vr(PP + 4 * b, 4), "0")
    tmp = bi
    vGA = tmp + 4
    act_store_addr(vGA, 0, True, False, WS_O); act_store_addr(vGA + 1, 1, True, False, WS_O)
    for b in range(4): g(f"v_rcp_f32 v{Dn+4*b}, v{Dn+4*b}")
    for b in range(4):
        for k in (0, 2): g(f"v_pk_mul_f32 {vr(Oa+4*b+k,2)}, {vr(Oa+4*b+k,2)}, {vr(Dn+4*b,2)} op_sel:[0,0] op_sel_hi:[1,0]")
    pk = Sp
    for k in range(8): g(f"v_cvt_pk_bf16_f32 v{pk+k}, v{Oa+2*k}, v{Oa+2*k+1}")
    for P in range(2):
        g(f"v_permlane16_swap_b32 v{pk+4*P}, v{pk+4*P+2}\nv_permlane16_swap_b32 v{pk+4*P+1}, v{pk+4*P+3}")
        g.vmem(f"buffer_store_dwordx4 {vr(pk+4*P,4)}, v{vGA+P}, s[{sWS}:{sWS+3}], 0 offen sc1", "stO")
    g.ts("o stored")
    publish(g, sRQ, CNT_O, "stO")
    g.ts("o published")
    g(f"s_cmp_ge_u32 s{sU14}, 14\ns_cbranch_scc1 Lp3skip")
    aP = vT
    v3 = vWF
    g(f"v_mov_b32 v{v3}, v{vLP32}\nv_xor_b32 v{v3+1}, 64, v{vLP32}\nv_add_u32 v{v3+2}, {R}, v{v3}\nv_add_u32 v{v3+3}, {R}, v{v3+1}")
    g(f"s_and_b32 s{sT1}, s{sW}, 1\ns_lshl_b32 s{sT1}, s{sT1}, 6\ns_lshr_b32 s{sT2}, s{sW}, 1\ns_mul_i32 s{sT2}, s{sT2}, {R}\nv_xor_b32 v{v3+4}, s{sT1}, v{vLP32}\nv_add_u32 v{v3+4}, s{sT2}, v{v3+4}")
    fr = v3 + 6
    def w3_read(dst, areg, t, tag):
        for e in range(2): g.ds(f"ds_read_b64_tr_b16 {vr(dst+2*e,2)}, v{areg} offset:{t*2048+512*e}", tag)
    D = 4
    for t in range(32 + D - 1):
        if t < 32: w3_read(fr + 4 * (t % 8), v3 + 4, t, f"s{t}")
        u = t - (D - 1)
        if u >= 0:
            g.wait(lg=f"s{u}")
            MF32(g, vr(aP, 16), vr(fr + 4 * (u % 8), 4), vr(vONE, 4), "0" if u == 0 else None)
    ca = fr + 32
    g(f"v_lshrrev_b32 v{ca}, 5, v{vL}\nv_lshlrev_b32 v{ca}, 6, v{ca}\nv_add_u32 v{ca}, {CS3}, v{ca}\ns_lshl_b32 s{sT1}, s{sW}, 7\nv_add_u32 v{ca+1}, s{sT1}, v{ca}")
    g(f"s_mov_b32 exec_lo, 1\ns_mov_b32 exec_hi, 1")
    for q in range(4): g.ds(f"ds_write_b128 v{ca+1}, {vr(aP+4*q,4)} offset:{16*q}")
    g("s_mov_b64 exec, -1")
    g(f"s_add_u32 s{sT1}, s{sRB}, {CNT_X}\ns_lshl_b32 s{sT1}, s{sT1}, 7\ns_add_u32 s{sT1}, s{sT1}, {WS_CNT}\nv_mov_b32 v{ca+2}, s{sT1}")
    g.wait(lg="all"); g("s_barrier")
    g.ts("cs3 done")
    poll(g, ca + 2, 1, 16)
    g.ts("x1 visible")
    s3 = sAB + 3
    g(f"s_lshl_b32 s{s3}, s{sRB}, 2\ns_add_u32 s{s3}, s{s3}, s{sW}")
    st = ca + 4
    g(f"v_lshlrev_b32 v{ca+3}, 2, v{vL}\ns_lshl_b32 s{sT2}, s{s3}, 12\ns_add_u32 s{sT2}, s{sT2}, {WS_ST}")
    for t in range(32):
        if t % 4 == 0: g(f"s_lshl_b32 s{sT3}, s{s3}, 15\ns_add_u32 s{sT3}, s{sT3}, {WS_X1 + t*1024}")
        g.vmem(f"buffer_load_dwordx4 {ar(64+4*t,4)}, v{vL16}, s[{sWS}:{sWS+3}], s{sT3} offen offset:{(t%4)*1024} sc1", f"x{t}")
    for f in range(16): g.vmem(f"buffer_load_dword v{st+f}, v{ca+3}, s[{sWS}:{sWS+3}], s{sT2} offen offset:{f*256} sc1", "st")
    seq = [(t, b) for t in range(32) for b in range(4)]
    D = 4
    for n in range(len(seq) + D - 1):
        if n < len(seq):
            t, b = seq[n]; w3_read(fr + 4 * (n % 8), v3 + b, t, f"s{n}")
        u = n - (D - 1)
        if u >= 0:
            t, b = seq[u]
            g.wait(vm=f"x{t}" if b == 0 else None, lg=f"s{u}")
            MF32(g, vr(aP + 16 * b, 16), vr(fr + 4 * (u % 8), 4), ar(64 + 4 * t, 4), "0" if t == 0 else None)
    g.ts("p3 mfma done")
    g.wait(vm="st")
    for k in range(2, 16, 2): g(f"v_pk_add_f32 {vr(st,2)}, {vr(st,2)}, {vr(st+k,2)}")
    g(f"v_add_f32 v{st}, v{st}, v{st+1}\nv_mul_f32 v{st}, {fl(1/512)}, v{st}\nv_mov_b32 v{st+1}, v{st}\nv_permlane32_swap_b32 v{st}, v{st+1}")
    g(f"v_fma_f32 v{st+1}, -v{st}, v{st}, v{st+1}\nv_max_f32 v{st+1}, 0, v{st+1}\nv_add_f32 v{st+1}, {fl(EPS)}, v{st+1}\nv_rsq_f32 v{st+1}, v{st+1}")
    cs = st + 2; gt = cs + 16; pk = gt + 16; sa = pk + 8
    g(f"v_and_b32 v{sa}, 31, v{vL}\nv_lshlrev_b32 v{sa}, 4, v{sa}\nv_lshrrev_b32 v{sa+1}, 5, v{vL}\nv_lshl_add_u32 v{sa}, v{sa+1}, 10, v{sa}")
    g(f"s_mul_i32 s{sT2}, s{s3}, 114688\ns_lshl_b32 s{sT1}, s{sU14}, 13\ns_add_u32 s{sT2}, s{sT2}, s{sT1}\ns_add_u32 s{sT2}, s{sT2}, {WS_H3}")
    for b in range(4):
        for q in range(4): g.ds(f"ds_read_b128 {vr(cs+4*q,4)}, v{ca} offset:{128*b+16*q}")
        g.wait(lg="all")
        norm_col(g, aP + 16 * b, cs, st, 16)
        gelu_pairs(g, [aP + 16 * b + 2 * k for k in range(8)], gt)
        for k in range(8): g(f"v_cvt_pk_bf16_f32 v{pk+k}, v{aP+16*b+2*k}, v{aP+16*b+2*k+1}")
        if b == 2: g(f"s_add_u32 s{sT2}, s{sT2}, 4096")
        for u in range(2): g.vmem(f"buffer_store_dwordx4 {vr(pk+4*u,4)}, v{sa}, s[{sWS}:{sWS+3}], s{sT2} offen offset:{(b%2)*2048+512*u} sc1", "stH")
    g.ts("h3 stored")
    publish(g, sRB, CNT_H3, "stH")
    g.ts("h3 published")
    g.label("Lp3skip")
    g.vm = []
    def w_dma(n):
        if n < 16: g.dma(sWO, vW1024, (None, n * 32768), (n % 36) * 4096, f"u{n//6}")
        else: g.dma(sW4, vW1024, (None, (n - 16) * 32768), (n % 36) * 4096, f"u{n//6}")
    pa = vRB
    g(f"s_add_u32 s{sT1}, s{sRQ}, {CNT_O}\ns_lshl_b32 s{sT1}, s{sT1}, 7\ns_add_u32 s{sT1}, s{sT1}, {WS_CNT}\nv_mov_b32 v{pa}, s{sT1}")
    g(f"s_add_u32 s{sT1}, s{sRB}, {CNT_H3}\ns_lshl_b32 s{sT1}, s{sT1}, 7\ns_add_u32 s{sT1}, s{sT1}, {WS_CNT}\nv_mov_b32 v{pa+1}, s{sT1}")
    for k in range(16): g(f"v_mov_b32 v{vAC1+k}, 0")
    poll(g, pa, 1, 8)
    for t in range(16): act_load(4 * t, sAB + 1, WS_O, t, f"a{t}")
    for n in range(36): w_dma(n)
    areg = lambda n: 4 * n if n < 16 else 64 + 4 * ((n - 16) % 48)
    issued = 16
    for c in range(12):
        g.wait(vm=f"u{c}", lg="all"); g("s_barrier")
        if c >= 1 and c + 5 < 12:
            for n in range(6 * (c + 5), 6 * (c + 6)): w_dma(n)
        t2_reads((6 * c % 36) * 4096, 0, f"w{6*c}")
        for n in range(6 * c, 6 * c + 6):
            if n == 16:
                g.ts("wo done")
                poll(g, pa + 1, 1, 14)
                g.ts("h3 visible")
            if n >= 16:
                while issued < 72 and issued < n + 24:
                    act_load(areg(issued), sAB + 2, WS_H3, issued - 16, f"a{issued}")
                    act_load(areg(issued + 1), sAB + 2, WS_H3, issued + 1 - 16, f"a{issued+1}")
                    issued += 2
            if n + 1 < 6 * c + 6: t2_reads(((n + 1) % 36) * 4096, (n + 1) & 1, f"w{n+1}")
            g.wait(vm=f"a{n}", lg=f"w{n}")
            t2_mfma(n & 1, ar(areg(n), 4))
    g.ts("p4 mfma done")
    reduce_pair(0)
    pk = vRB + 16; sa = pk + 8
    for k in range(8): g(f"v_cvt_pk_bf16_f32 v{pk+k}, v{vRES+2*k}, v{vRES+2*k+1}")
    g(f"v_and_b32 v{sa}, 15, v{vL}\nv_lshlrev_b32 v{sa}, 11, v{sa}\nv_bfe_u32 v{sa+1}, v{vL}, 4, 1\nv_lshl_add_u32 v{sa}, v{sa+1}, 10, v{sa}\nv_lshrrev_b32 v{sa+1}, 5, v{vL}\nv_lshl_add_u32 v{sa}, v{sa+1}, 5, v{sa}")
    g(f"s_lshl_b32 s{sT1}, s{sC8}, 1\ns_lshr_b32 s{sT2}, s{sW}, 1\ns_add_u32 s{sT1}, s{sT1}, s{sT2}\ns_lshl_b32 s{sT1}, s{sT1}, 6\ns_add_u32 s{sT1}, s{sT1}, s{sAB+1}")
    for u in range(2): g.vmem(f"buffer_store_dwordx4 {vr(pk+4*u,4)}, v{sa}, s[{sOUT}:{sOUT+3}], s{sT1} offen offset:{16*u}", "out")
    if diag:
        g.wait(vm="all")
        g.ts("end")
        g(f"s_lshl_b32 s{sT1}, s2, 2\ns_add_u32 s{sT1}, s{sT1}, s{sW}\ns_lshl_b32 s{sT1}, s{sT1}, 8\ns_add_u32 s{sT1}, s{sT1}, {WS_DIAG}\nv_lshlrev_b32 v{sa}, 2, v{vL}")
        g(f"buffer_store_dword v{vTS}, v{sa}, s[{sWS}:{sWS+3}], s{sT1} offen")
    g.label("Lend")
    lines, nn = hazard.fix(g.lines)
    return wrap("\n".join(lines) + "\n", 256, 256, LDS_BYTES, 512, accum=256)

if __name__ == "__main__":
    diag = "--diag" in sys.argv
    out = sys.argv[1]
    open(out, "w").write(gen(diag))
    if diag: open(out + ".ts", "w").write("\n".join(TSNAMES))
```

```python
import sys, struct, math
from collections import deque
sys.path.insert(0, "gen")
from asmlib import *
import hazard, align

WS_G, WS_O, WS_X1, WS_H3, WS_ST, WS_CNT, WS_DIAG = 0, 2 << 20, 4 << 20, 6 << 20, 14 << 20, 15 << 20, 16 << 20
WS_SIZE = 17 << 20
CNT_H, CNT_O, CNT_X, CNT_HA, CNT_HB = 0, 32, 64, 80, 96
R = 81920
TBL = R + 73728
T_MEAN, T_RSTD, T_A2 = 0, 320, 640
CS3 = TBL + 1024
LDS_BYTES = 163840
sX, sWQKV, sWO, sW1, sW2, sW3, sW4, sOUT, sWS, sDBG, sCODE = 4, 8, 12, 16, 20, 24, 28, 32, 36, 40, 44
sW, sRQ, sC8, sRB, sU14, sROT, sW1K, sSPIN = 48, 49, 50, 51, 52, 53, 54, 55
sXK, sW1Ks, sQK = 56, 64, 72
sT0, sT1, sT2, sT3 = 80, 81, 82, 83
sM1, sM2, sM3, sMD = 84, 86, 88, 90
sMZ = 92
sTS = 96
sA0 = 98
sXB = 99
sC1 = 100
sSIG, sPOL, sSIGB = 0, 1, 53
sTAU, sTO1, sTO2 = 99, 92, 93
sCT = 3
SPINMAX = 200000
EPS = 1e-5
def f2u(x): return struct.unpack("<I", struct.pack("<f", x))[0]
def fl(x): return hex(f2u(x))
GC0 = -2 * math.sqrt(2 / math.pi) * math.log2(math.e)
GC1 = GC0 * 0.044715
QSCALE = 0.25 * math.log2(math.e)
TSNAMES = []

class Alloc:
    def __init__(self, lo, hi): self.p = lo; self.hi = hi; self.peak = lo
    def __call__(self, n=1, al=None):
        al = al or (2 if n > 1 else 1)
        self.p = (self.p + al - 1) // al * al
        r = self.p; self.p += n
        assert self.p <= self.hi, f"out of regs {self.p}"
        self.peak = max(self.peak, self.p)
        return r
    def mark(self): return self.p
    def reset(self, m): self.p = m

class G(Asm):
    def __init__(self, diag=False):
        super().__init__()
        self.vm = []; self.lg = []; self.diag = diag; self.nts = 0; self.seen = set(); self.tail = []
    def vmem(self, s, tag=None):
        self(s); self.vm.append(tag); self.seen.add(("v", tag)); assert len(self.vm) <= 63, "too many vmem outstanding"
    def ds(self, s, tag=None):
        self(s); self.lg.append(tag); self.seen.add(("l", tag))
    def _n(self, lst, tag):
        tags = tag if isinstance(tag, (list, tuple)) else [tag]
        idx = [i for i, t in enumerate(lst) if t in tags]
        if not idx: return None
        return len(lst) - 1 - idx[-1]
    def wait(self, vm=None, lg=None):
        parts = []
        for k_, t_ in (("v", vm), ("l", lg)):
            if t_ is not None and t_ != "all":
                for x_ in (t_ if isinstance(t_, (list, tuple)) else [t_]): assert (k_, x_) in self.seen, f"wait on unissued tag {x_}"
        if vm is not None:
            n = (0 if self.vm else None) if vm == "all" else self._n(self.vm, vm)
            if n is not None:
                parts.append(f"vmcnt({n})"); self.vm = self.vm[len(self.vm) - n:] if n else []
        if lg is not None:
            n = (0 if self.lg else None) if lg == "all" else self._n(self.lg, lg)
            if n is not None:
                n = min(n, 15); parts.append(f"lgkmcnt({n})"); self.lg = self.lg[len(self.lg) - n:] if n else []
        if parts: self("s_waitcnt " + " ".join(parts))
    def forget(self):
        self.seen = {x for x in self.seen if x[0] == "v" or x[1] in self.lg or x[1] == "cs"}
    def ts(self, name):
        if not self.diag or (self.diag == 2 and name != "end") or (isinstance(self.diag, list) and name not in self.diag): return
        self.c(f"TS {self.nts} {name}")
        self(f"s_memtime s[{sTS}:{sTS+1}]\ns_waitcnt lgkmcnt(0)\nv_writelane_b32 v{vTS}, s{sTS}, {self.nts}")
        self.lg = []
        TSNAMES.append(name); self.nts += 1
    def I(self, s, cost=1): return [(lambda s=l: self(s), cost) for l in s.strip().split("\n")]
    def Ids(self, s, tag=None): return [(lambda: self.ds(s, tag), 1)]
    def Ivm(self, s, tag=None): return [(lambda: self.vmem(s, tag), 1)]
    def Idma(self, srd, voff, soff, lds, tag):
        sreg, imm = soff
        lreg, limm = lds if isinstance(lds, tuple) else (sW1K, lds)
        it = self.I(f"s_add_u32 m0, s{lreg}, {limm}")
        if sreg is None: it += self.I(f"s_mov_b32 s{sT0}, {imm}"); so = f"s{sT0}"
        elif imm == 0: so = f"s{sreg}"
        else: it += self.I(f"s_add_u32 s{sT0}, s{sreg}, {imm}"); so = f"s{sT0}"
        it += self.Ivm(f"buffer_load_dwordx4 v{voff}, s[{srd}:{srd+3}], {so} offen lds", tag)
        return it
    def run(self, items):
        for f, c in items: f()
    def weave(self, main, fills, flush=True):
        qs = [[deque(it), rate, 0.0] for it, rate in fills]
        for m in main:
            m()
            for q in qs:
                q[2] += q[1]
                while q[0] and q[2] >= q[0][0][1] - 1e-9:
                    f, c = q[0].popleft(); f(); q[2] -= c
        rest = [list(q[0]) for q in qs]
        if flush:
            for r in rest: self.run(r)
        return rest

V = Alloc(0, 256)
v0_ = V(); vL = V(); vW1024 = V(); vW3072 = V(); vW3584 = V()
vTR16a = V(); vTR16b = V(); vTS = V()
vXr0 = V(2); vXh0 = V(2); vL128 = V(); vDUM = V()
vAG = V(); vAO = V(); vAX = V(); vAH = V(2); vSTL = V()
vSX = V(); vSS = V(); vSH = V(2)
vONE = V(4); vSEL = V(4); vGC0 = V(2); vPA = V(2); vXS = V(2); vXT = V(8)
vRES = V(16); vAC1 = V(16)
vGAo = V(2); vOUT = V(); vT2 = V(6); v3 = V(5); vPLH = V(); vPLX = V(); vPLO = V(); vPLA = V(); vPLB = V(); vPV = V()
vTC = V(); vTRW = V(); vRD = V(2); vCW = V(); vCR = V(); vSG = V(); vPG = V()
vBI = V(16); vAM = V(8)
PERSIST = V.mark()
sW4T = [72, 73, 74, 75, 76, 77, 78, 79, 84, 85, 86, 87, 88, 89]

def MF16(g, d, a, b, c=None): g(f"v_mfma_f32_16x16x32_bf16 {d}, {a}, {b}, {c if c is not None else d}")
def MF32(g, d, a, b, c=None): g(f"v_mfma_f32_32x32x16_bf16 {d}, {a}, {b}, {c if c is not None else d}")

def gelu_pk(regs, tmp):
    t = [tmp + 2 * i for i in range(len(regs))]
    L = []
    for i, r in enumerate(regs): L.append(f"v_pk_mul_f32 {vr(t[i],2)}, {vr(r,2)}, {vr(r,2)}")
    for i, r in enumerate(regs): L.append(f"v_pk_fma_f32 {vr(t[i],2)}, {vr(t[i],2)}, s[{sC1}:{sC1+1}], {vr(vGC0,2)}")
    for i, r in enumerate(regs): L.append(f"v_pk_mul_f32 {vr(t[i],2)}, {vr(t[i],2)}, {vr(r,2)}")
    for i, r in enumerate(regs): L += [f"v_exp_f32 v{t[i]}, v{t[i]}", f"v_exp_f32 v{t[i]+1}, v{t[i]+1}"]
    for i, r in enumerate(regs): L.append(f"v_pk_add_f32 {vr(t[i],2)}, {vr(t[i],2)}, 1.0 op_sel_hi:[1,0]")
    for i, r in enumerate(regs): L += [f"v_rcp_f32 v{t[i]}, v{t[i]}", f"v_rcp_f32 v{t[i]+1}, v{t[i]+1}"]
    for i, r in enumerate(regs): L.append(f"v_pk_mul_f32 {vr(r,2)}, {vr(r,2)}, {vr(t[i],2)}")
    return L

def norm_pk(acc, cs, st, n):
    L = []
    for k in range(0, n, 2):
        L.append(f"v_pk_fma_f32 {vr(acc+k,2)}, {vr(cs+k,2)}, {vr(st,2)}, {vr(acc+k,2)} op_sel:[0,0,0] op_sel_hi:[1,0,1] neg_lo:[0,1,0] neg_hi:[0,1,0]")
    for k in range(0, n, 2):
        L.append(f"v_pk_mul_f32 {vr(acc+k,2)}, {vr(acc+k,2)}, {vr(st,2)} op_sel:[0,1] op_sel_hi:[1,1]")
    return L

def valu_main(g, L): return [(lambda s=s: g(s)) for s in L]

def signal(g, addr_v, soob=None):
    g(f"v_or_b32 v{vSG}, s{soob or sSIG}, v{addr_v}\ns_mov_b64 exec, 1")
    g.vmem(f"buffer_atomic_add v{vPA+1}, v{vSG}, s[{sWS}:{sWS+3}], 0 offen sc1", "sig")
    g("s_mov_b64 exec, -1")

def poll_issue(g, addr_v, tag, srd=None):
    srd = srd or sWS
    return g.I(f"v_or_b32 v{vPG}, s{sPOL}, v{addr_v}") + g.Ivm(f"buffer_load_dword v{vPV}, v{vPG}, s[{srd}:{srd+3}], 0 offen sc1", tag)

def poll_check(g, target, tag, sleep=4, srd=None):
    srd = srd or sWS
    lab = g.newlabel("Lpoll"); done = g.newlabel("Lpolld")
    g.wait(vm=tag)
    g(f"v_or_b32 v{vPV}, s{sPOL}, v{vPV}\nv_cmp_gt_u32 vcc, {target}, v{vPV}\ns_mov_b32 s{sSPIN}, {SPINMAX}\ns_nop 3\ns_cbranch_vccnz {lab}")
    g.label(done)
    g.tail.append(f"{lab}:\ns_sleep {sleep}\nbuffer_load_dword v{vPV}, v{vPG}, s[{srd}:{srd+3}], 0 offen sc1\ns_sub_u32 s{sSPIN}, s{sSPIN}, 1\ns_cbranch_scc1 {done}\ns_waitcnt vmcnt(0)\n"
                  f"v_cmp_gt_u32 vcc, {target}, v{vPV}\ns_nop 4\ns_cbranch_vccnz {lab}\ns_branch {done}")

def gen(diag=False, pace=None, opt=None):
    opt = opt or {}
    TSNAMES.clear()
    V.reset(PERSIST)
    g = G(diag)
    cat = lambda its: sum(its, [])
    g("s_cmp_ge_u32 s2, 256\ns_cbranch_scc1 Lend")
    SRDS = ((sX, 0, 2 << 20), (sW1, 32, 1 << 19), (sWQKV, 8, 3 << 19), (sWS, 80, WS_SIZE), (sDBG, 72, 256), (sW2, 40, 1 << 19), (sW3, 48, 7 << 18), (sW4, 56, 7 << 18), (sWO, 16, 1 << 19), (sOUT, 64, 2 << 20))
    for srd, off, n in SRDS: g(f"s_load_dwordx2 s[{srd}:{srd+1}], s[0:1], {off}")
    if diag or pace: g(f"v_mov_b32 v{vTS}, 0\ns_memrealtime s[{sMZ}:{sMZ+1}]\ns_memtime s[{sMZ+2}:{sMZ+3}]")
    g(f"s_getpc_b64 s[{sCODE}:{sCODE+1}]")
    g.label("Lpc")
    g(f"s_mov_b32 s{sCODE+2}, Lend-Lpc\ns_mov_b32 s{sCODE+3}, 0x20000")
    t0, t1, t2, t3 = V(), V(), V(), V()
    c_, g_, e_, q_, lp = V(), V(), V(), V(), V()
    KEEP = V.mark()
    vXd0, vXd1, vXh = V(), V(), V()
    g(f"v_and_b32 v{vL}, 63, v0\nv_lshrrev_b32 v{t0}, 6, v0\nv_lshlrev_b32 v{t1}, 7, v0\nv_readfirstlane_b32 s{sW}, v{t0}")
    g(f"s_lshl_b32 s{sCT}, s2, 12\ns_and_b32 s{sCT}, s{sCT}, 0x8000")
    g.vmem(f"buffer_load_dword v{vDUM}, v{t1}, s[{sCODE}:{sCODE+3}], s{sCT} offen", "touch")
    g(f"s_lshr_b32 s{sT0}, s2, 3")
    g(f"s_and_b32 s{sT1}, s2, 6\ns_lshl_b32 s{sT1}, s{sT1}, 2\ns_lshr_b32 s{sT2}, s{sT0}, 2\ns_add_u32 s{sRQ}, s{sT1}, s{sT2}")
    g(f"s_and_b32 s{sT1}, s2, 1\ns_lshl_b32 s{sT2}, s{sT1}, 2\ns_and_b32 s{sC8}, s{sT0}, 3\ns_add_u32 s{sC8}, s{sC8}, s{sT2}")
    g(f"s_lshl_b32 s{sT2}, s{sC8}, 1\ns_add_u32 s{sROT}, s{sRQ}, s{sT2}\ns_add_u32 s{sROT}, s{sROT}, s{sT1}\ns_and_b32 s{sROT}, s{sROT}, 7")
    g(f"s_lshl_b32 s{sW1K}, s{sW}, 10\ns_lshl_b32 s{sXB}, s{sW}, 14")
    for srd, off, n in SRDS[:2]: g(f"s_mov_b32 s{srd+2}, {n}\ns_mov_b32 s{srd+3}, 0x20000")
    def rot_tab(i): return f"s_add_u32 s{sT1}, s{sROT}, {i}\ns_and_b32 s{sT1}, s{sT1}, 7\ns_lshl_b32 s{sXK+i}, s{sT1}, 7\ns_lshl_b32 s{sW1Ks+i}, s{sT1}, 16"
    g(f"s_lshl_b32 s{sXK}, s{sROT}, 7\ns_lshl_b32 s{sW1Ks}, s{sROT}, 16")
    g(f"v_lshrrev_b32 v{t0}, 3, v{vL}\nv_and_b32 v{t1}, 7, v{vL}")
    g(f"v_lshrrev_b32 v{g_}, 4, v{vL}\nv_xor_b32 v{t2}, v{g_}, v{t1}\nv_lshlrev_b32 v{t2}, 4, v{t2}")
    g(f"v_lshl_add_u32 v{t2}, v{t0}, 11, v{t2}")
    g(f"s_lshr_b32 s{sT1}, s{sW}, 1\ns_lshl_b32 s{sT1}, s{sT1}, 5\ns_and_b32 s{sT2}, s{sW}, 1\ns_add_u32 s{sT1}, s{sT1}, s{sT2}")
    g(f"s_lshl_b32 s{sT3}, s{sRQ}, 6\ns_add_u32 s{sT1}, s{sT1}, s{sT3}\ns_lshl_b32 s{sT1}, s{sT1}, 10")
    g(f"v_add_u32 v{vXd0}, s{sT1}, v{t2}\nv_xor_b32 v{vXd1}, 64, v{vXd0}\nv_add_u32 v{vXd1}, 16384, v{vXd1}")
    g(f"s_add_u32 s{sT1}, s{sT3}, s{sT2}\ns_sub_u32 s{sT1}, s{sT1}, 16\ns_lshl_b32 s{sT1}, s{sT1}, 10\ns_lshl_b32 s{sT3}, s{sT2}, 6")
    g(f"v_xor_b32 v{vXh}, s{sT3}, v{t2}\nv_add_u32 v{vXh}, s{sT1}, v{vXh}")
    g(f"v_lshlrev_b32 v{t3}, 1, v{t0}\nv_and_b32 v{t3}, 4, v{t3}\nv_xor_b32 v{t3}, v{t3}, v{t1}\ns_lshl_b32 s{sT2}, s{sT2}, 1\nv_xor_b32 v{t3}, s{sT2}, v{t3}\nv_lshlrev_b32 v{t3}, 4, v{t3}")
    g(f"s_lshl_b32 s{sT1}, s{sW}, 3\nv_add_u32 v{t2}, s{sT1}, v{t0}")
    g(f"s_lshl_b32 s{sT1}, s{sC8}, 7\nv_add_u32 v{t0}, s{sT1}, v{t3}")
    g(f"v_lshl_add_u32 v{vW1024}, v{t2}, 10, v{t0}")
    g("s_waitcnt lgkmcnt(0)")
    if diag or pace: g(f"v_writelane_b32 v{vTS}, s{sMZ}, 63\nv_writelane_b32 v{vTS}, s{sMZ+2}, 0")
    if diag: TSNAMES.append("entry"); g.nts = 1
    g.ts("kernarg")
    W1L = lambda i: R + 8192 * (i + 1)
    def p1a_dma(i):
        it = g.Idma(sX, vXd0, (sXK + i, 0), (sXB, i * 2048), f"c{i}") + g.Idma(sX, vXd1, (sXK + i, 0), (sXB, i * 2048 + 1024), f"c{i}")
        for t in range(2): it += g.Idma(sW1, vW1024, (sW1Ks + i, t * 32768), W1L(i) + t * 4096, f"c{i}")
        return it
    NPRE = opt.get("npre", 2)
    g.run(p1a_dma(0))
    for i in range(1, NPRE): g(rot_tab(i)); g.run(p1a_dma(i))
    for i in range(NPRE, 8): g(rot_tab(i))
    g(f"s_lshr_b32 s{sT1}, s{sW}, 1\ns_lshl_b32 s{sT2}, s{sT1}, 13\ns_and_b32 s{sT3}, s{sW}, 1\ns_lshl_b32 s{sT3}, s{sT3}, 10\ns_add_u32 s{sA0}, s{sT2}, s{sT3}")
    g(f"s_lshl_b32 s{sT1}, s{sT1}, 9\ns_mov_b32 exec_lo, 0xffffff00")
    for q in range(4):
        it = g.Idma(sX, vXh, (sT2, 0), (sA0, 65536 + q * 2048), "c0")
        g.run(it[:1]); g(f"s_xor_b32 s{sT2}, s{sXK+q}, s{sT1}"); g.run(it[1:])
    g("s_mov_b32 exec_lo, -1")
    for srd, off, n in SRDS[2:]: g(f"s_mov_b32 s{srd+2}, {n}\ns_mov_b32 s{srd+3}, 0x20000")
    g(f"v_lshlrev_b32 v{vL128}, 7, v{vL}")
    def touch(srd, nl, atomic=False):
        if atomic:
            it = touch(srd, nl); return [(lambda: g.run(it), 1)]
        return g.I(f"s_lshl_b32 s{sT3}, s2, 2\ns_add_u32 s{sT3}, s{sT3}, s{sW}\ns_mul_i32 s{sT3}, s{sT3}, {nl*128}\ns_bfm_b64 exec, {nl}, 0") + \
               g.Ivm(f"buffer_load_dword v{vDUM}, v{vL128}, s[{srd}:{srd+3}], s{sT3} offen", "touch") + g.I("s_mov_b64 exec, -1")
    if opt.get("touch1", 0) == 1: g.run(touch(sWQKV, 12))
    g(f"s_or_b32 s{sT1}, s2, s{sW}\ns_cbranch_scc0 Lz")
    g.label("Lnz")
    g.tail.append(f"Lz:\nv_add_u32 v{vPV}, {WS_CNT}, v{vL128}\nv_mov_b32 v{vPA}, 0\ns_mov_b32 s{sT1}, 8192\n"
                  f"buffer_store_dword v{vPA}, v{vPV}, s[{sWS}:{sWS+3}], 0 offen sc1\nbuffer_store_dword v{vPA}, v{vPV}, s[{sWS}:{sWS+3}], s{sT1} offen sc1\ns_branch Lnz")
    S = []
    def s(x): S.extend(x.split("\n"))
    vXp = V(8); vTP = V(4); vGAh = V(2); vXTa = V(2); vXSa = V()
    s(f"v_mul_u32_u24 v{vW3072}, 3072, v{t2}\nv_add_u32 v{vW3072}, v{vW3072}, v{t0}")
    s(f"s_lshr_b32 s{sRB}, s{sRQ}, 1\ns_and_b32 s{sT1}, s2, 1\ns_mul_i32 s{sT1}, s{sT1}, 7\ns_bfe_u32 s{sT2}, s2, 0x30003\ns_add_u32 s{sU14}, s{sT1}, s{sT2}\ns_cmp_eq_u32 s{sT2}, 7\ns_cselect_b32 s{sU14}, 14, s{sU14}")
    s(f"s_lshl_b32 s{sT1}, s{sU14}, 8\nv_add_u32 v{t0}, s{sT1}, v{t3}\nv_mul_u32_u24 v{vW3584}, 3584, v{t2}\nv_add_u32 v{vW3584}, v{vW3584}, v{t0}")
    for i in range(8): s(f"s_mul_i32 s{sQK+i}, s{sW1Ks+i}, 3")
    for i in range(4): s(f"v_mov_b32 v{vONE+i}, 0x3f803f80")
    s(f"v_lshrrev_b32 v{t0}, 3, v{vL}\nv_lshlrev_b32 v{t0}, 11, v{t0}\nv_lshl_add_u32 v{t0}, v{t1}, 4, v{t0}\nv_add_u32 v{t0}, 65536, v{t0}")
    S.append(("ds", f"ds_write_b128 v{t0}, {vr(vONE,4)}")); S.append(("ds", f"ds_write_b128 v{t0}, {vr(vONE,4)} offset:1024"))
    s(f"v_mov_b32 v{vPA}, 0\nv_mov_b32 v{vPA+1}, 1")
    s(f"v_and_b32 v{c_}, 15, v{vL}\nv_bfe_u32 v{e_}, v{vL}, 2, 2\nv_and_b32 v{q_}, 3, v{vL}")
    s(f"v_lshrrev_b32 v{t0}, 1, v{c_}\nv_xor_b32 v{t0}, v{t0}, v{g_}\nv_lshlrev_b32 v{t0}, 4, v{t0}\nv_lshl_add_u32 v{vXr0}, v{c_}, 7, v{t0}")
    s(f"v_xor_b32 v{vXr0+1}, 64, v{vXr0}\nv_add_u32 v{vXh0}, 65536, v{vXr0}\nv_add_u32 v{vXh0+1}, 65536, v{vXr0+1}")
    s(f"v_lshrrev_b32 v{t0}, 1, v{q_}\ns_lshl_b32 s{sT1}, s{sW}, 1\nv_add_u32 v{t0}, s{sT1}, v{t0}")
    s(f"v_lshlrev_b32 v{t1}, 1, v{e_}\nv_and_b32 v{t1}, 4, v{t1}\nv_and_b32 v{t2}, 1, v{g_}\nv_lshl_add_u32 v{t2}, v{t2}, 1, v{t1}\nv_xor_b32 v{t0}, v{t0}, v{t2}")
    s(f"v_lshl_add_u32 v{t2}, v{g_}, 3, v{e_}\nv_lshlrev_b32 v{t2}, 7, v{t2}\nv_lshl_add_u32 v{t0}, v{t0}, 4, v{t2}\nv_and_b32 v{t2}, 1, v{q_}\nv_lshl_add_u32 v{t0}, v{t2}, 3, v{t0}")
    s(f"v_add_u32 v{vTR16a}, {R}, v{t0}\nv_add_u32 v{vTR16b}, {R+36864}, v{t0}")
    for i in range(4):
        s(f"s_xor_b32 s{sT1}, s{sW}, {i}\ns_lshl_b32 s{sT1}, s{sT1}, 14\nv_add_u32 v{vXp+2*i}, s{sT1}, v{vXr0}\nv_add_u32 v{vXp+2*i+1}, s{sT1}, v{vXr0+1}")
    n_s1a = len(S)
    s(f"v_mov_b32 v{vGC0}, {fl(GC0)}\nv_mov_b32 v{vGC0+1}, {fl(GC0)}\ns_mov_b32 s{sC1}, {fl(GC1)}\ns_mov_b32 s{sC1+1}, {fl(GC1)}")
    s(f"s_mov_b32 s{sM1}, 0x22222222\ns_mov_b32 s{sM1+1}, 0x22222222\ns_mov_b32 s{sM2}, 0x44444444\ns_mov_b32 s{sM2+1}, 0x44444444")
    s(f"s_mov_b32 s{sM3}, 0x88888888\ns_mov_b32 s{sM3+1}, 0x88888888\ns_mov_b32 s{sMD}, 0x00F0000F\ns_mov_b32 s{sMD+1}, 0xF0000F00")
    s(f"v_lshlrev_b32 v{vTC}, 2, v{c_}\nv_add_u32 v{vTC}, {TBL}, v{vTC}")
    for i in range(4): s(f"s_xor_b32 s{sT1}, s{sW}, {i}\ns_lshl_b32 s{sT1}, s{sT1}, 6\nv_add_u32 v{vTP+i}, s{sT1}, v{vTC}")
    def act_store_addr(dst, P, natural, shift, base):
        a0, a1, a2 = t0, t1, t2
        s(f"v_bfe_u32 v{a0}, v{vL}, 4, 1\nv_add_u32 v{a0}, {2*P}, v{a0}")
        if not natural: s(f"v_xor_b32 v{a0}, s{sW}, v{a0}")
        s(f"v_and_b32 v{a1}, 1, v{a0}\nv_lshrrev_b32 v{a0}, 1, v{a0}\nv_lshl_add_u32 v{a0}, v{a0}, 5, v{a1}\nv_lshl_add_u32 v{a0}, v{c_}, 1, v{a0}")
        s(f"s_lshl_b32 s{sT1}, s{sRQ}, 6")
        if shift: s(f"s_add_u32 s{sT1}, s{sT1}, s{sT3}")
        s(f"v_add_u32 v{a0}, s{sT1}, v{a0}")
        if shift: s(f"v_cmp_gt_u32 s[{sMZ+2*P}:{sMZ+2*P+1}], s{sT2}, v{a0}\nv_and_b32 v{a0}, 2047, v{a0}")
        s(f"v_lshrrev_b32 v{a1}, 5, v{a0}\nv_lshlrev_b32 v{a1}, 15, v{a1}\nv_and_b32 v{a2}, 1, v{a0}\nv_lshl_add_u32 v{a1}, v{a2}, 8, v{a1}\nv_bfe_u32 v{a2}, v{a0}, 1, 4\nv_lshl_add_u32 v{a1}, v{a2}, 4, v{a1}")
        s(f"v_lshrrev_b32 v{a2}, 5, v{vL}\nv_lshl_add_u32 v{a1}, v{a2}, 9, v{a1}")
        s(f"s_lshl_b32 s{sT1}, s{sC8}, 2\ns_add_u32 s{sT1}, s{sT1}, s{sW}\ns_lshl_b32 s{sT1}, s{sT1}, 10\ns_add_u32 s{sT1}, s{sT1}, {base}\nv_add_u32 v{dst}, s{sT1}, v{a1}")
    S.append(("blk", f"s_lshr_b32 s{sT3}, s{sC8}, 2\ns_add_u32 s{sT3}, s{sT3}, 1\ns_sub_u32 s{sT2}, 0, s{sT3}\ns_bitcmp1_b32 s{sC8}, 1\ns_cselect_b32 s{sT3}, s{sT2}, s{sT3}\ns_movk_i32 s{sT2}, 2048"))
    act_store_addr(vGAh, 0, False, True, WS_G); act_store_addr(vGAh + 1, 1, False, True, WS_G)
    s(f"v_lshrrev_b32 v{t1}, 1, v{c_}\nv_lshrrev_b32 v{t2}, 5, v{vL}\nv_lshlrev_b32 v{t2}, 1, v{t2}\ns_and_b32 s{sT1}, s{sW}, 2\ns_lshl_b32 s{sT1}, s{sT1}, 1\nv_add_u32 v{t2}, s{sT1}, v{t2}")
    s(f"v_xor_b32 v{t1}, v{t1}, v{t2}\nv_lshlrev_b32 v{t1}, 4, v{t1}\nv_lshl_add_u32 v{t1}, v{c_}, 7, v{t1}\nv_bfe_u32 v{t2}, v{vL}, 4, 1\nv_lshl_add_u32 v{t1}, v{t2}, 14, v{t1}")
    s(f"s_sub_u32 s{sT1}, s{sC8}, s{sROT}\ns_and_b32 s{sT1}, s{sT1}, 7\ns_lshl_b32 s{sT1}, s{sT1}, 11\ns_and_b32 s{sT2}, s{sW}, 1\ns_lshl_b32 s{sT3}, s{sT2}, 15\ns_add_u32 s{sT1}, s{sT1}, s{sT3}\nv_add_u32 v{vXTa}, s{sT1}, v{t1}\nv_xor_b32 v{vXTa+1}, 16, v{vXTa}")
    s(f"v_and_b32 v{t0}, 31, v{vL}\nv_lshlrev_b32 v{vXSa}, 2, v{t0}\ns_lshl_b32 s{sT2}, s{sT2}, 7\ns_add_u32 s{sT2}, s{sT2}, {TBL}\nv_add_u32 v{vXSa}, s{sT2}, v{vXSa}")
    S.append(("blk", f"s_cmp_eq_u32 s{sW}, 0\ns_cselect_b32 s{sSIG}, 0, 0x80000000\ns_cmp_eq_u32 s{sW}, {opt.get('pw', 3)}\ns_cselect_b32 s{sPOL}, 0, 0x80000000"))
    S1 = S
    S = []
    s(f"v_min_u32 v{t0}, 2, v{vL}\nv_mul_u32_u24 v{t1}, v{t0}, v{t0}\nv_mul_u32_u24 v{t1}, 3, v{t1}\nv_mul_u32_u24 v{t0}, 5, v{t0}\nv_sub_u32 v{t0}, v{t1}, v{t0}\nv_ashrrev_i32 v{t0}, 1, v{t0}")
    s(f"v_add_u32 v{t0}, s{sRQ}, v{t0}\nv_and_b32 v{t0}, 31, v{t0}\nv_lshlrev_b32 v{t0}, 7, v{t0}\nv_add_u32 v{vPLH}, {WS_CNT + CNT_H*128}, v{t0}")
    for reg, sr_, base in ((vPLX, sRB, CNT_X), (vPLO, sRQ, CNT_O), (vPLA, sRB, CNT_HA), (vPLB, sRB, CNT_HB)):
        s(f"s_lshl_b32 s{sT1}, s{sr_}, 7\ns_add_u32 s{sT1}, s{sT1}, {WS_CNT + base*128}\nv_mov_b32 v{reg}, s{sT1}")
    s(f"s_lshl_b32 s{sT2}, s{sRQ}, 1\ns_and_b32 s{sT1}, s{sW}, 1\ns_add_u32 s{sT2}, s{sT2}, s{sT1}")
    s(f"s_lshr_b32 s{sT1}, s{sW}, 1\ns_lshl_b32 s{sT1}, s{sT1}, 10\nv_lshl_add_u32 v{t0}, v{vL}, 4, s{sT1}")
    s(f"s_lshl_b32 s{sT3}, s{sT2}, 15\nv_add_u32 v{vAG}, s{sT3}, v{t0}\nv_add_u32 v{vAO}, {WS_O}, v{vAG}")
    s(f"s_mul_i32 s{sT1}, s{sT2}, 114688\ns_add_u32 s{sT1}, s{sT1}, {WS_H3}\nv_add_u32 v{vAH}, s{sT1}, v{t0}\nv_add_u32 v{vAH+1}, 4096, v{vAH}")
    s(f"v_and_b32 v{t0}, 31, v{vL}\nv_lshlrev_b32 v{t0}, 4, v{t0}\nv_lshrrev_b32 v{t1}, 5, v{vL}\nv_lshl_add_u32 v{t0}, v{t1}, 10, v{t0}")
    s(f"v_lshlrev_b32 v{vOUT}, 11, v{c_}\nv_bfe_u32 v{t2}, v{vL}, 4, 1\nv_lshl_add_u32 v{vOUT}, v{t2}, 10, v{vOUT}\nv_lshl_add_u32 v{vOUT}, v{t1}, 5, v{vOUT}\nv_add_u32 v{vOUT}, s{sT3}, v{vOUT}")
    s(f"v_add_u32 v{vSX}, s{sT3}, v{t0}\ns_lshl_b32 s{sT1}, s{sC8}, 1\ns_lshr_b32 s{sT3}, s{sW}, 1\ns_add_u32 s{sT1}, s{sT1}, s{sT3}")
    s(f"s_lshl_b32 s{sT3}, s{sT1}, 6\nv_add_u32 v{vOUT}, s{sT3}, v{vOUT}\ns_lshl_b32 s{sT3}, s{sT1}, 11\ns_add_u32 s{sT3}, s{sT3}, {WS_X1}\nv_add_u32 v{vSX}, s{sT3}, v{vSX}")
    s(f"s_lshl_b32 s{sT3}, s{sT2}, 4\ns_add_u32 s{sT3}, s{sT3}, s{sT1}\ns_lshl_b32 s{sT3}, s{sT3}, 8\ns_add_u32 s{sT3}, s{sT3}, {WS_ST}\nv_lshl_add_u32 v{vSS}, v{vL}, 2, s{sT3}")
    s(f"s_lshl_b32 s{sT2}, s{sRB}, 2\ns_add_u32 s{sT2}, s{sT2}, s{sW}")
    s(f"s_lshl_b32 s{sT1}, s{sT2}, 15\ns_add_u32 s{sT1}, s{sT1}, {WS_X1}\nv_lshl_add_u32 v{vAX}, v{vL}, 4, s{sT1}")
    s(f"s_lshl_b32 s{sT1}, s{sT2}, 12\ns_add_u32 s{sT1}, s{sT1}, {WS_ST}\nv_lshl_add_u32 v{vSTL}, v{vL}, 2, s{sT1}")
    s(f"s_mul_i32 s{sT1}, s{sT2}, 114688\ns_lshl_b32 s{sT3}, s{sU14}, 13\ns_add_u32 s{sT1}, s{sT1}, s{sT3}\ns_add_u32 s{sT1}, s{sT1}, {WS_H3}\nv_add_u32 v{vSH}, s{sT1}, v{t0}\nv_add_u32 v{vSH+1}, 4096, v{vSH}")
    s(f"v_lshlrev_b32 v{vCR}, 6, v{t1}\nv_add_u32 v{vCR}, {CS3}, v{vCR}")
    s(f"v_lshlrev_b32 v{t1}, 1, v{e_}\nv_and_b32 v{t1}, 4, v{t1}")
    s(f"v_and_b32 v{t0}, 1, v{q_}\nv_and_b32 v{t2}, 1, v{g_}\nv_lshl_add_u32 v{t0}, v{t0}, 1, v{t2}")
    s(f"v_and_b32 v{t2}, 2, v{g_}\nv_add_u32 v{t3}, v{t2}, v{t1}\nv_xor_b32 v{t0}, v{t0}, v{t3}")
    s(f"v_lshl_add_u32 v{t2}, v{t2}, 2, v{e_}\nv_lshlrev_b32 v{t2}, 7, v{t2}\nv_lshl_add_u32 v{t0}, v{t0}, 4, v{t2}\nv_lshrrev_b32 v{t2}, 1, v{q_}\nv_lshl_add_u32 v{lp}, v{t2}, 3, v{t0}")
    s(f"s_lshr_b32 s{sT1}, s{sW}, 1\ns_lshl_b32 s{sT2}, s{sT1}, 6\ns_lshl_b32 s{sT1}, s{sT1}, 11\nv_xor_b32 v{vT2}, s{sT2}, v{lp}\nv_add_u32 v{vT2}, s{sT1}, v{vT2}\nv_xor_b32 v{vT2+1}, 64, v{vT2}")
    for k in (1, 2): s(f"v_add_u32 v{vT2+2*k}, {61440*k}, v{vT2}\nv_add_u32 v{vT2+2*k+1}, {61440*k}, v{vT2+1}")
    s(f"v_mov_b32 v{v3}, v{lp}\nv_xor_b32 v{v3+1}, 64, v{lp}\nv_add_u32 v{v3+2}, {R}, v{v3}\nv_add_u32 v{v3+3}, {R}, v{v3+1}")
    s(f"s_and_b32 s{sT1}, s{sW}, 1\ns_lshl_b32 s{sT1}, s{sT1}, 6\ns_lshr_b32 s{sT2}, s{sW}, 1\ns_mul_i32 s{sT2}, s{sT2}, {R}\nv_xor_b32 v{v3+4}, s{sT1}, v{lp}\nv_add_u32 v{v3+4}, s{sT2}, v{v3+4}")
    s(f"s_lshl_b32 s{sT1}, s{sW}, 12\ns_add_u32 s{sT1}, s{sT1}, 65536\nv_lshl_add_u32 v{vRD}, v{vL}, 4, s{sT1}\nv_xor_b32 v{vRD+1}, 8192, v{vRD}")
    n_s2a = len(S)
    s(f"v_lshlrev_b32 v{vTRW}, 4, v{g_}\nv_add_u32 v{vTRW}, {TBL}, v{vTRW}")
    act_store_addr(vGAo, 0, True, False, WS_O); s(f"v_add_u32 v{vGAo+1}, 32768, v{vGAo}")
    s(f"v_and_b32 v{t0}, 1, v{g_}\nv_lshlrev_b32 v{t0}, 6, v{t0}\nv_lshl_add_u32 v{t0}, v{c_}, 5, v{t0}\nv_lshrrev_b32 v{t2}, 1, v{g_}\nv_lshl_add_u32 v{t0}, v{t2}, 4, v{t0}")
    s(f"s_lshl_b32 s{sT1}, s{sW}, 7\ns_add_u32 s{sT1}, s{sT1}, {CS3}\nv_add_u32 v{vCW}, s{sT1}, v{t0}")
    s(f"v_xor_b32 v{t0}, v{c_}, v{g_}\nv_and_b32 v{t0}, 1, v{t0}\nv_add_u32 v{t0}, -1, v{t0}")
    for i in range(4): s(f"v_and_b32 v{vSEL+i}, v{vONE}, v{t0}")
    s(f"v_lshlrev_b32 v{t1}, 2, v{g_}\nv_sub_u32 v{t0}, v{c_}, v{t1}")
    S.append(("blk", f"s_cmp_eq_u32 s{sRQ}, 0\ns_cselect_b32 s{sT3}, {fl(-1e30)}, 0"))
    s(f"v_sub_u32 v{lp}, 1, v{g_}\nv_ashrrev_i32 v{lp}, 31, v{lp}")
    NEG = fl(-1e30)
    for r in range(4):
        s(f"v_subrev_u32 v{t1}, {r}, v{t0}")
        s(f"v_sub_u32 v{t2}, 7, v{t1}\nv_or_b32 v{t2}, v{t2}, v{t1}\nv_ashrrev_i32 v{t2}, 31, v{t2}\nv_and_b32 v{vBI+r}, {NEG}, v{t2}")
        s(f"v_sub_u32 v{t2}, -9, v{t1}\nv_ashrrev_i32 v{t2}, 31, v{t2}\nv_and_b32 v{vBI+4+r}, {NEG}, v{t2}\nv_or_b32 v{vBI+12+r}, s{sT3}, v{vBI+4+r}")
        s(f"v_not_b32 v{t2}, v{t1}\nv_ashrrev_i32 v{t2}, 31, v{t2}\nv_or_b32 v{t2}, v{t2}, v{lp}\nv_and_b32 v{t2}, {NEG}, v{t2}\nv_or_b32 v{vBI+8+r}, s{sT3}, v{t2}")
    s(f"s_mov_b32 s{sT1}, 0x07060302")
    for t in range(4):
        for k in range(2):
            s(f"v_ashrrev_i32 v{t0}, 31, v{vBI+4*t+2*k}\nv_ashrrev_i32 v{t1}, 31, v{vBI+4*t+2*k+1}\nv_perm_b32 v{t0}, v{t1}, v{t0}, s{sT1}\nv_not_b32 v{vAM+2*t+k}, v{t0}")
    S2 = S
    def Sitems(L):
        it = []
        for x in L:
            if isinstance(x, tuple) and x[0] == "ds": it += g.Ids(x[1])
            elif isinstance(x, tuple): it.append((lambda x=x: g(x[1]), len(x[1].split("\n"))))
            else: it += g.I(x)
        return it
    def atomize(L):
        out = []
        for x in L:
            if out and isinstance(x, str) and x.startswith("s_cselect") and isinstance(out[-1], str): out[-1] = ("blk", out[-1] + "\n" + x)
            else: out.append(x)
        return out
    NP2 = opt.get("npre2", 4)
    dm = cat(p1a_dma(i) for i in range(NPRE, NP2))
    s2n = min(len(S2), opt.get("s2early", 1000))
    SM = [f for f, c in Sitems(atomize(S1) + S2[:s2n])]
    w0 = int(len(SM) * opt.get("w0", 0.6))
    g.weave(SM[:w0], []); g.weave(SM[w0:], [(dm, opt.get("r1", 0.16))])
    S2 = S2[s2n:]
    g.ts("setup done")

    def tr16(dst, ldsoff, tag):
        o = ldsoff - R
        reg, o = (vTR16a, o) if o < 36864 else (vTR16b, o - 36864)
        return cat(g.Ids(f"ds_read_b64_tr_b16 {ar(dst+2*e,2)}, v{reg} offset:{o+512*e}", tag) for e in range(2))
    def stats_calc(gr, sm, tmp, a2=True):
        q0, mean, var, rstd = tmp, tmp + 1, tmp + 2, tmp + 3
        L = (f"v_cndmask_b32 v{q0}, v{gr}, v{gr+1}, s[{sM1}:{sM1+1}]\nv_cndmask_b32 v{q0}, v{q0}, v{gr+2}, s[{sM2}:{sM2+1}]\nv_cndmask_b32 v{q0}, v{q0}, v{gr+3}, s[{sM3}:{sM3+1}]\n"
          f"v_mul_f32 v{mean}, {fl(1/512)}, v{sm}\nv_mul_f32 v{q0}, {fl(1/512)}, v{q0}\nv_fma_f32 v{var}, -v{mean}, v{mean}, v{q0}\nv_max_f32 v{var}, 0, v{var}\n"
          f"v_add_f32 v{rstd}, {fl(EPS)}, v{var}\nv_rsq_f32 v{rstd}, v{rstd}").split("\n")
        if a2: L += f"v_mul_f32 v{var}, v{var}, v{rstd}\nv_mul_f32 v{var}, v{var}, v{rstd}\nv_add_f32 v{var}, {fl(EPS)}, v{var}\nv_rsq_f32 v{var}, v{var}\nv_mul_f32 v{var}, v{var}, v{rstd}".split("\n")
        return L
    def bcast_g0(dst, src, tmp):
        return [f"v_mov_b32 v{dst}, v{src}", f"v_mov_b32 v{tmp}, v{src}", f"v_permlane16_swap_b32 v{dst}, v{tmp}", f"v_mov_b32 v{tmp}, v{dst}", f"v_permlane32_swap_b32 v{dst}, v{tmp}"]

    hA = V(16); csA = V(4); grA = V(4); smA = V(4); grH = V(4)
    QSLOT = lambda j: R + 12288 * (j % 6)
    def qkv_dma(j):
        return cat(g.Idma(sWQKV, vW3072, (sQK + (j >> 1), (j & 1) * 32 * 3072 + s_ * 1024), QSLOT(j) + s_ * 4096, f"q{j}") for s_ in range(3))
    W2L = lambda u: R + (49152 + 4096 * u) % 73728
    def p1a_reads(i):
        it = []
        for ks in (2 * i, 2 * i + 1): it += tr16((ks & 3) * 24, W1L(i) + (ks & 1) * 4096, f"r{2*i}")
        for ks in (2 * i, 2 * i + 1):
            fb = (ks & 3) * 24
            it += g.Ids(f"ds_read_b128 {ar(fb+4,4)}, v{vXp+(ks&1)} offset:{i*2048}", f"r{ks}")
            it += g.Ids(f"ds_read_b128 {ar(fb+20,4)}, v{vXh0+(ks&1)} offset:{i*2048}", f"r{ks}")
            for b in range(1, 4): it += g.Ids(f"ds_read_b128 {ar(fb+4+4*b,4)}, v{vXp+2*b+(ks&1)} offset:{i*2048}", f"r{ks}")
        return it
    def p1a_mfma(ks):
        fb = (ks & 3) * 24; z = "0" if ks == 0 else None
        L = [lambda: (g.wait(lg=f"r{ks}"), MF16(g, vr(grA, 4), ar(fb + 4, 4), ar(fb + 4, 4), z))]
        L.append(lambda: MF16(g, vr(smA, 4), vr(vONE, 4), ar(fb + 4, 4), z))
        L.append(lambda: MF16(g, vr(grH, 4), ar(fb + 20, 4), ar(fb + 20, 4), z))
        L.append(lambda: MF16(g, vr(csA, 4), ar(fb, 4), vr(vONE, 4), z))
        for b in range(4): L.append(lambda b=b: MF16(g, vr(hA + 4 * b, 4), ar(fb, 4), ar(fb + 4 + 4 * b, 4), z))
        return L
    free_after = {1: [0], 2: [1], 4: [2], 5: [3], 7: [4]}
    nxtc = NP2; dq = []; qpend = []
    CPER = opt.get("cper", 2)
    for i in range(8):
        g.wait(vm=f"c{i}", lg="all" if i == 0 else f"r{2*i-2}")
        g("s_barrier")
        if i in (0, 3): g.ts(f"c{i} landed")
        if i == NPRE:
            g(f"s_or_b32 s{sT1}, s2, s{sW}\ns_cbranch_scc0 Lr")
            g.label("Lnr")
            g.tail.append(f"Lr:\ns_mov_b64 exec, 1\nbuffer_store_dword v{vPA+1}, v{vPA}, s[{sDBG}:{sDBG+3}], 0 offen sc1\ns_mov_b64 exec, -1\ns_branch Lnr")
        if i == 7: g.ts("c7 landed")
        qpend += free_after.get(i, [])
        dq = []
        k = CPER
        while k and nxtc < 8: dq += p1a_dma(nxtc); nxtc += 1; k -= 1
        if nxtc == 8 and opt.get("touch1", 0) == 2 and "t1" not in g.seen: dq += touch(sWQKV, 12, True); g.seen.add("t1")
        while k and qpend: dq += qkv_dma(qpend.pop(0)); k -= 1
        rd = p1a_reads(i)
        if i == 0: g.run(rd + dq)
        else: g.weave(p1a_mfma(2 * i - 2) + p1a_mfma(2 * i - 1), [(rd, 1.0), (dq, len(dq) / 15.0 + 0.01)])
    dq = cat(qkv_dma(j) for j in qpend)
    dq = g.weave(p1a_mfma(14) + p1a_mfma(15), [(dq, 1.0)], flush=False)[0]
    g.ts("p1a mfma done")
    ta = V(4); tb = V(4); smH = V(2)
    for x in stats_calc(grA, smA, ta): g(x)
    g(f"s_mov_b64 exec, s[{sMD}:{sMD+1}]")
    g.ds(f"ds_write_b32 v{vTP}, v{ta+1} offset:{T_MEAN}"); g.ds(f"ds_write_b32 v{vTP}, v{ta+2} offset:{T_A2}"); g.ds(f"ds_write_b32 v{vTP}, v{ta+3} offset:{T_RSTD}")
    g("s_mov_b64 exec, -1")
    g.run(dq)
    for x in bcast_g0(smH, grH, smH + 1): g(x)
    g.wait(lg="all"); g("s_barrier")
    vST = V(8); gt = V(16)
    for i in range(4): g.ds(f"ds_read2_b32 {vr(vST+2*i,2)}, v{vTP+i} offset0:{T_MEAN//4} offset1:{T_A2//4}", f"s{i}")
    g.ds(f"ds_read_b128 {vr(vXT,4)}, v{vXTa}"); g.ds(f"ds_read_b128 {vr(vXT+4,4)}, v{vXTa+1}")
    g.ds(f"ds_read2_b32 {vr(vXS,2)}, v{vXSa} offset0:{T_MEAN//4} offset1:{T_RSTD//4}")
    for x in stats_calc(grH, smH, tb, a2=False): g(x)
    g(f"s_mov_b64 exec, s[{sMD}:{sMD+1}]")
    g.ds(f"ds_write_b32 v{vTC}, v{tb+1} offset:{T_MEAN+256}"); g.ds(f"ds_write_b32 v{vTC}, v{tb+3} offset:{T_RSTD+256}")
    g("s_mov_b64 exec, -1")
    Q5LATE = opt.get("q5late", 1)
    dm = ([] if Q5LATE else qkv_dma(5)) + poll_issue(g, vPA, "rdy", sDBG)
    g.wait(lg="s3")
    L = []
    for i in range(4): L += norm_pk(hA + 4 * i, csA, vST + 2 * i, 4)
    L += gelu_pk([hA + 2 * k for k in range(8)], gt)
    pk = gt
    for k in range(8): L.append(f"v_cvt_pk_bf16_f32 v{pk+k}, v{hA+2*k}, v{hA+2*k+1}")
    for P in range(2): L += [f"v_permlane16_swap_b32 v{pk+4*P}, v{pk+4*P+2}", f"v_permlane16_swap_b32 v{pk+4*P+1}, v{pk+4*P+3}"]
    for P in range(2):
        for k in range(4): L.append(f"v_cndmask_b32 v{pk+4*P+k}, 0, v{pk+4*P+k}, s[{sMZ+2*P}:{sMZ+2*P+1}]")
    def touch2():
        if opt.get("touch2", 1):
            g(f"s_lshl_b32 s{sT3}, s2, 2\ns_add_u32 s{sT3}, s{sT3}, s{sW}\ns_mul_i32 s{sT2}, s{sT3}, {14*128}\ns_lshl_b32 s{sT3}, s{sT3}, 9\ns_bfm_b64 exec, 14, 0")
            for srd in (sW3, sW4): g.vmem(f"buffer_load_dword v{vDUM}, v{vL128}, s[{srd}:{srd+3}], s{sT2} offen", "touch")
            g("s_mov_b64 exec, 15")
            for srd in (sW2, sWO): g.vmem(f"buffer_load_dword v{vDUM}, v{vL128}, s[{srd}:{srd+3}], s{sT3} offen", "touch")
            g("s_mov_b64 exec, -1")
    g.weave(valu_main(g, L[:40]), [(dm, 0.3)])
    if opt.get("t2pos", 2) == 0: touch2()
    g.weave(valu_main(g, L[40:]), [])
    for P in range(2): g.vmem(f"buffer_store_dwordx4 {vr(pk+4*P,4)}, v{vGAh+P}, s[{sWS}:{sWS+3}], 0 offen sc1", "stG")
    if Q5LATE: g.run(qkv_dma(5))
    if opt.get("t2pos", 2) == 1: touch2()
    g(f"s_bfe_u32 s{sTAU}, s2, 0x30003\ns_lshr_b32 s{sT1}, s2, 6\ns_lshl_b32 s{sT1}, s{sT1}, 3\ns_and_b32 s{sT2}, s2, 7\ns_add_u32 s{sT1}, s{sT1}, s{sT2}")
    g(f"s_and_b32 s{sT2}, s{sTAU}, 3\ns_lshl_b32 s{sT2}, s{sT2}, 5\ns_add_u32 s{sT1}, s{sT1}, s{sT2}\ns_lshl_b32 s{sT1}, s{sT1}, 2\ns_add_u32 s{sT1}, s{sT1}, s{sW}\ns_mul_i32 s{sTO2}, s{sT1}, {28*128}\ns_lshl_b32 s{sTO1}, s{sT1}, 10")
    def touch2s(k):
        lab = g.newlabel("Lt2"); back = g.newlabel("Lt2b")
        a_, b_ = (sW2, sW3) if k < 4 else (sWO, sW4)
        g.tail.append(f"{lab}:\ns_bfm_b64 exec, 8, 0\nbuffer_load_dword v{vDUM}, v{vL128}, s[{a_}:{a_+3}], s{sTO1} offen\ns_bfm_b64 exec, 28, 0\nbuffer_load_dword v{vDUM}, v{vL128}, s[{b_}:{b_+3}], s{sTO2} offen\ns_mov_b64 exec, -1\ns_branch {back}")
        return [(lambda: g(f"s_cmp_eq_u32 s{sTAU}, {k}\ns_cbranch_scc1 {lab}\n{back}:"), 2)]
    g.ts("h stored")
    V.reset(KEEP)
    g.forget()
    qA = V(16); kA = V(20); vA = V(20); cq = V(4)
    QEND = V.mark()
    WF = lambda j: 64 + (j & 1) * 12
    XF = lambda j: 88 + (j % 3) * 20
    def qkv_rw(j): return cat(tr16(WF(j) + 4 * s_, QSLOT(j) + s_ * 4096, f"r{j}") for s_ in range(3))
    def qkv_rx(j):
        itx = []
        for b in range(4): itx += g.Ids(f"ds_read_b128 {ar(XF(j)+4*b,4)}, v{vXr0+(j&1)} offset:{b*16384+(j>>1)*2048}", f"x{j}")
        return itx + g.Ids(f"ds_read_b128 {ar(XF(j)+16,4)}, v{vXh0+(j&1)} offset:{(j>>1)*2048}", f"x{j}")
    def qkv_mfma(j):
        fb = WF(j); z = "0" if j == 0 else None
        X = lambda b: ar(XF(j) + 4 * b, 4)
        L = []
        for b in range(4): L.append(lambda b=b: MF16(g, vr(qA + 4 * b, 4), ar(fb, 4), X(b), z))
        for b in range(5): L.append(lambda b=b: MF16(g, vr(kA + 4 * b, 4), ar(fb + 4, 4), X(b), z))
        for b in range(5): L.append(lambda b=b: MF16(g, vr(vA + 4 * b, 4), X(b), ar(fb + 8, 4), z))
        L.append(lambda: MF16(g, vr(cq, 4), ar(fb, 4), vr(vONE, 4), z))
        return L
    def act_load(dst, voff, stab, odd, tag):
        it = [] if odd else g.I(f"s_lshr_b32 s{sA0}, s{stab}, 4")
        return it + g.Ivm(f"buffer_load_dwordx4 {ar(dst,4)}, v{voff}, s[{sWS}:{sWS+3}], s{sA0} offen offset:{odd*2048} sc1", tag)
    w512 = lambda srd, u, lds, tag: g.Idma(srd, vW1024, (sW1Ks + (u >> 1), (u & 1) * 32768), lds, tag)
    JPUB = opt.get("jpub", 3); JPOLL = opt.get("jpoll", 9); JCHK = opt.get("jchk", 12)
    gl = 0
    s2 = Sitems([f"s_mul_i32 s{sXK+i}, s{sXK+i}, 1792" for i in range(8)] + S2)
    assert not S2
    g.run(qkv_rx(0) + s2); s2 = []
    for j in range(17):
        g.wait(vm=([f"q{j}"] if j < 16 else []) + (["stG"] if j == JPUB else []), lg=f"r{j-1}" if j else None)
        if j == JPUB: poll_check(g, 1, "rdy", srd=sDBG)
        if j == JCHK: poll_check(g, 8, "pollH")
        g("s_barrier")
        if j == JPUB: signal(g, vPLH); g.ts("h published")
        if j == JCHK: g.ts("h visible")
        rd = (qkv_rw(j) if j < 16 else []) + (qkv_rx(j + 1) if j < 15 else [])
        dm = []
        if j == JPOLL: dm += poll_issue(g, vPLH, "pollH")
        if j >= 1:
            nxt = j + 5
            if nxt < 16: dm += qkv_dma(nxt)
            else:
                for u in range(3 * (nxt - 16), min(16, 3 * (nxt - 16) + 3)): dm += w512(sW2, u, W2L(u), "w2")
        if opt.get("t2pos", 2) == 2:
            for k in range(8):
                if opt.get("t2j", 0) + int(k * opt.get("t2s", 1)) == j: dm += touch2s(k)
        if j >= JCHK:
            k = opt.get("gper", 2) if j < 16 else 4
            for t in range(gl, min(16, gl + k)): dm += act_load(4 * t, vAG, sW1Ks + (t >> 1), t & 1, f"g{t}")
            gl = min(16, gl + k)
        if j == 0: g.run(rd + dm)
        else: g.weave(qkv_mfma(j - 1), [(rd, 0.8), (dm, sum(c for f, c in dm) / 13.0 + 0.01)])
    g.ts("qkv mfma done")
    print("S2 left after QKV:", len(s2))
    g.forget()
    aWF = 128
    def t2_reads(ldsoff, slot, tag):
        k = ldsoff // 61440; o = ldsoff - 61440 * k
        return cat(g.Ids(f"ds_read_b64_tr_b16 {ar(aWF+8*slot+4*f+2*e,2)}, v{vT2+2*k+f} offset:{o+512*e}", tag) for f in range(2) for e in range(2))
    def t2_mfma(slot, act, wtag, atag, z0=None, z1=None):
        return [lambda: (g.wait(vm=atag, lg=wtag), MF32(g, vr(vAC1, 16), ar(aWF + 8 * slot + 4, 4), act, z1)),
                lambda: MF32(g, vr(vRES, 16), ar(aWF + 8 * slot, 4), act, z0)]
    for t in range(gl, 16): g.run(act_load(4 * t, vAG, sW1Ks + (t >> 1), t & 1, f"g{t}"))
    g.wait(vm="w2"); g("s_barrier")
    w3 = lambda u, hf, lds: g.Idma(sW3, vW3584, (sXK + (u >> 1), (u & 1) * 32 * 3584 + 128 * hf), lds, f"w3{hf}")
    code_touch = g.I(f"v_lshlrev_b32 v{vPV}, 7, v0") + g.Ivm(f"buffer_load_dword v{vDUM}, v{vPV}, s[{sCODE}:{sCODE+3}], s{sCT} offen", "touch")
    w3a = cat(w3(u, 0, u * 4096) for u in range(16))
    if opt.get("ct2", 1): w3a = code_touch + w3a
    w3b = cat(w3(u, 1, R + u * 4096) for u in range(16))
    vRB = V(16); pk = V(8); s1 = V(2); s2_ = V(2); xf = V(16)
    tab = [("blk", f"s_lshl_b32 s{sT1}, s{sROT}, 1\ns_cmp_ge_u32 s{sT1}, 14\ns_cselect_b32 s{sT1}, 1, s{sT1}\ns_lshl_b32 s{sW4T[0]}, s{sT1}, 17")]
    for u in range(1, 14): tab.append(("blk", f"s_add_u32 s{sT1}, s{sW4T[u-1]}, {1<<17}\ns_cmp_eq_u32 s{sT1}, {14<<17}\ns_cselect_b32 s{sW4T[u]}, 0, s{sT1}"))
    pre = []
    for k in range(8): pre += [f"v_lshlrev_b32 v{xf+2*k}, 16, v{vXT+k}", f"v_and_b32 v{xf+2*k+1}, 0xffff0000, v{vXT+k}"]
    g.run(t2_reads(W2L(0), 0, "w0") + t2_reads(W2L(1), 1, "w1"))
    main = []; rd = []
    for t in range(16):
        main += t2_mfma(t % 4, ar(4 * t, 4), f"w{t}", f"g{t}", *(("0", "0") if t == 0 else ()))
        if t + 2 < 16: rd += t2_reads(W2L(t + 2), (t + 2) % 4, f"w{t+2}")
    rest = g.weave(main, [(rd, 2.0), (w3a, 1.4), (s2 + Sitems(pre), 2.0)], flush=False)
    g.ts("p2 mfma done")
    def reduce_send():
        for q in range(4): g.ds(f"ds_write_b128 v{vRD}, {vr(vAC1+4*q,4)} offset:{q*1024}")
    def reduce_recv():
        g.wait(lg="all"); g("s_barrier")
        for q in range(4): g.ds(f"ds_read_b128 {vr(vRB+4*q,4)}, v{vRD+1} offset:{q*1024}", f"rb{q}")
    g.run(rest[1] + rest[2])
    reduce_send()
    for k in range(0, 16, 2):
        g(f"v_pk_add_f32 {vr(vRB+k,2)}, {vr(xf+k,2)}, {vr(vXS,2)} op_sel:[0,0] op_sel_hi:[1,0] neg_lo:[0,1] neg_hi:[0,1]")
    for k in range(0, 16, 2):
        g(f"v_pk_fma_f32 {vr(vRES+k,2)}, {vr(vRB+k,2)}, {vr(vXS,2)}, {vr(vRES+k,2)} op_sel:[0,1,0] op_sel_hi:[1,1,1]")
    reduce_recv()
    for k in range(0, 16, 2):
        if k % 4 == 0: g.wait(lg=f"rb{k//4}")
        g(f"v_pk_add_f32 {vr(vAC1+k,2)}, {vr(vRES+k,2)}, {vr(vRB+k,2)}")
        g(f"v_cvt_pk_bf16_f32 v{pk+k//2}, v{vAC1+k}, v{vAC1+k+1}")
        if k % 8 == 6: g.vmem(f"buffer_store_dwordx4 {vr(pk+4*(k//8),4)}, v{vSX}, s[{sWS}:{sWS+3}], 0 offen offset:{512*(k//8)} sc1", "stX")
    g(f"v_pk_add_f32 {vr(s1,2)}, {vr(vAC1,2)}, {vr(vAC1+2,2)}\nv_pk_mul_f32 {vr(s2_,2)}, {vr(vAC1,2)}, {vr(vAC1,2)}")
    for k in range(2, 16, 2):
        if k > 2: g(f"v_pk_add_f32 {vr(s1,2)}, {vr(s1,2)}, {vr(vAC1+k,2)}")
        g(f"v_pk_fma_f32 {vr(s2_,2)}, {vr(vAC1+k,2)}, {vr(vAC1+k,2)}, {vr(s2_,2)}")
    g(f"v_add_f32 v{s1}, v{s1}, v{s1+1}\nv_add_f32 v{s2_}, v{s2_}, v{s2_+1}")
    g(f"v_pk_add_f32 {vr(vRES,2)}, {vr(vAC1,2)}, {vr(xf,2)}\nv_pk_add_f32 {vr(vRES+2,2)}, {vr(vAC1+2,2)}, {vr(xf+2,2)}")
    g(f"v_permlane32_swap_b32 v{s1}, v{s2_}\nv_add_f32 v{s1}, v{s1}, v{s2_}")
    g.vmem(f"buffer_store_dword v{s1}, v{vSS}, s[{sWS}:{sWS+3}], 0 offen sc1", "stX")
    g.ts("x1 stored")
    for k in range(4, 16, 2): g(f"v_pk_add_f32 {vr(vRES+k,2)}, {vr(vAC1+k,2)}, {vr(xf+k,2)}")
    V.reset(QEND)
    vSRm = V(20); vSRr = V(20); vSC = V(10)
    ck = (PERSIST + 1) // 2 * 2; cv = ck + 4; assert cv + 2 <= KEEP
    for b in range(5): g.ds(f"ds_read2_b32 {vr(vSC+2*b,2)}, v{vTC} offset0:{T_MEAN//4+16*b} offset1:{T_RSTD//4+16*b}", "sc")
    for b in range(5):
        g.ds(f"ds_read_b128 {vr(vSRm+4*b,4)}, v{vTRW} offset:{T_MEAN+64*b}", "sr"); g.ds(f"ds_read_b128 {vr(vSRr+4*b,4)}, v{vTRW} offset:{T_RSTD+64*b}", "sr")
    A = []
    def a(s_):
        for l in s_.split("\n"): A.append(lambda l=l: g(l))
    for r in range(4): a(f"v_mov_b32_dpp v{ck+r}, v{kA+16+r} row_newbcast:0 row_mask:0xf bank_mask:0xf")
    a("\n".join(bcast_g0(cv, vA + 16, cv + 1)))
    A.append(lambda: g.wait(lg="sc"))
    for b in range(5): a("\n".join(norm_pk(kA + 4 * b, ck, vSC + 2 * b, 4)))
    for b in range(4): a(f"v_mul_f32 v{vSC+2*b+1}, {fl(QSCALE)}, v{vSC+2*b+1}")
    for b in range(4): a("\n".join(norm_pk(qA + 4 * b, cq, vSC + 2 * b, 4)))
    qP = vAC1; kP = vSC
    for b in range(4):
        for k in range(2): a(f"v_cvt_pk_bf16_f32 v{qP+2*b+k}, v{qA+4*b+2*k}, v{qA+4*b+2*k+1}")
    for b in range(5):
        for k in range(2): a(f"v_cvt_pk_bf16_f32 v{kP+2*b+k}, v{kA+4*b+2*k}, v{kA+4*b+2*k+1}")
    A.append(lambda: g.wait(lg="sr"))
    for b in range(5):
        for k in (0, 2): a(f"v_pk_fma_f32 {vr(vA+4*b+k,2)}, {vr(vSRm+4*b+k,2)}, {vr(cv,2)}, {vr(vA+4*b+k,2)} op_sel_hi:[1,0,1] neg_lo:[1,0,0] neg_hi:[1,0,0]")
    for b in range(5):
        for k in (0, 2): a(f"v_pk_mul_f32 {vr(vA+4*b+k,2)}, {vr(vA+4*b+k,2)}, {vr(vSRr+4*b+k,2)}")
    iPUB = len(A)
    Sc = qA; Sp = kA; vP = vSRm
    vc = [f"v_cvt_pk_bf16_f32 v{vP+6*p+2*n+k}, v{vA+4*b+2*k}, v{vA+4*b+2*k+1}" for p in range(2) for n, b in enumerate((4, p, 2 + p)) for k in range(2)]
    for b in range(4):
        tg, p = b >> 1, b & 1
        pb = 4 if tg == 0 else p
        pbias = (vBI + 8 + 4 * p) if tg == 0 else vBI + 4
        a(f"v_mfma_f32_16x16x16_bf16 {vr(Sc+4*b,4)}, {vr(kP+2*b,2)}, {vr(qP+2*b,2)}, {vr(vBI,4)}\n{vc[3*b]}\n{vc[3*b+1]}")
        a(f"v_mfma_f32_16x16x16_bf16 {vr(Sp+4*b,4)}, {vr(kP+2*pb,2)}, {vr(qP+2*b,2)}, {vr(pbias,4)}\n{vc[3*b+2]}")
    PP = vSRr; Oa = vA; Dn = Sc; mx = Sp
    for b in range(4):
        for r in range(4): a(f"v_max_f32 v{Sc+4*b+r}, v{Sc+4*b+r}, v{Sp+4*b+r}")
    for b in range(4): a(f"v_max3_f32 v{mx+4*b+2}, v{Sc+4*b}, v{Sc+4*b+1}, v{Sc+4*b+2}")
    for b in range(4): a(f"v_max_f32 v{mx+4*b}, v{mx+4*b+2}, v{Sc+4*b+3}\nv_max_f32 v{mx+4*b+1}, v{mx+4*b+2}, v{Sc+4*b+3}")
    for b in range(4): a(f"v_permlane16_swap_b32 v{mx+4*b}, v{mx+4*b+1}")
    for b in range(4): a(f"v_max_f32 v{mx+4*b+2}, v{mx+4*b}, v{mx+4*b+1}\nv_max_f32 v{mx+4*b+3}, v{mx+4*b}, v{mx+4*b+1}")
    for b in range(4): a(f"v_permlane32_swap_b32 v{mx+4*b+2}, v{mx+4*b+3}")
    for b in range(4): a(f"v_max_f32 v{mx+4*b}, v{mx+4*b+2}, v{mx+4*b+3}")
    for b in range(4):
        for k in (0, 2): a(f"v_pk_add_f32 {vr(Sc+4*b+k,2)}, {vr(Sc+4*b+k,2)}, {vr(mx+4*b,2)} op_sel:[0,0] op_sel_hi:[1,0] neg_lo:[0,1] neg_hi:[0,1]")
    for b in range(4):
        for r in range(4): a(f"v_exp_f32 v{Sc+4*b+r}, v{Sc+4*b+r}")
    for b in range(4):
        for k in range(2): a(f"v_cvt_pk_bf16_f32 v{PP+4*b+2+k}, v{Sc+4*b+2*k}, v{Sc+4*b+2*k+1}")
    for b in range(4):
        tg, p = b >> 1, b & 1
        pm = (vAM + 4 + 2 * p) if tg == 0 else vAM + 2
        for k in range(2): a(f"v_and_b32 v{PP+4*b+k}, v{pm+k}, v{PP+4*b+2+k}")
        for k in range(2): a(f"v_and_b32 v{PP+4*b+2+k}, v{vAM+k}, v{PP+4*b+2+k}")
    for b in range(4): a(f"v_mfma_f32_16x16x32_bf16 {vr(Dn+4*b,4)}, {vr(vONE,4)}, {vr(PP+4*b,4)}, 0")
    for b in range(4):
        tg, p = b >> 1, b & 1
        a(f"v_mfma_f32_16x16x32_bf16 {vr(Oa+4*b,4)}, {vr(vP+6*p+2*tg,4)}, {vr(PP+4*b,4)}, 0")
    for b in range(4): a(f"v_rcp_f32 v{Dn+4*b}, v{Dn+4*b}")
    for b in range(4):
        for k in (0, 2): a(f"v_pk_mul_f32 {vr(Oa+4*b+k,2)}, {vr(Oa+4*b+k,2)}, {vr(Dn+4*b,2)} op_sel:[0,0] op_sel_hi:[1,0]")
    pk = vAC1 + 8
    for k in range(8): a(f"v_cvt_pk_bf16_f32 v{pk+k}, v{Oa+2*k}, v{Oa+2*k+1}")
    for P in range(2): a(f"v_permlane16_swap_b32 v{pk+4*P}, v{pk+4*P+2}\nv_permlane16_swap_b32 v{pk+4*P+1}, v{pk+4*P+3}")
    iPUB += opt.get("ipub", 0)
    rest = g.weave(A[:iPUB], [(w3b, 0.22)], flush=False)
    g.wait(vm="stX"); g("s_barrier"); signal(g, vPLX)
    g.ts("x1 published")
    iPX = len(A) - opt.get("ipx", 0)
    r_ = g.weave(A[iPUB:iPX], [(rest[0], 0.3), (Sitems(tab), 0.35)], flush=False)
    g.run(r_[0] + poll_issue(g, vPLX, "pollX"))
    g.weave(A[iPX:], [(r_[1], 0.35)])
    for P in range(2): g.vmem(f"buffer_store_dwordx4 {vr(pk+4*P,4)}, v{vGAo+P}, s[{sWS}:{sWS+3}], 0 offen sc1", "stO")
    g.ts("o stored")
    V.reset(vBI)
    base_slots = [65536 + 4096 * i for i in range(4)] + [R + 65536 + 4096 * i for i in range(2)] + [R + 4096 * i for i in range(16)] + [4096 * i for i in range(16)]
    W4L = lambda n: base_slots[n % 38]
    def w4_dma(n): return g.Idma(sW4, vW1024, (sW4T[(n % 28) >> 1], ((n // 28) * 2 + (n & 1)) * 32768), W4L(n), f"f{n}")
    wol = cat(w512(sWO, u, 4096 * u, "wo") for u in range(16))
    ol = cat(act_load(4 * t, vAO, sW1Ks + (t >> 1), t & 1, f"a{t}") for t in range(16))
    hslots = [224 + 4 * i for i in range(8)] + [64 + 4 * i for i in range(16)] + [160 + 4 * i for i in range(16)] + [4 * i for i in range(16)]
    hreg = lambda n: hslots[n]
    hl = lambda n: act_load(hreg(n), vAH + n // 28, sW4T[(n % 28) >> 1], n & 1, f"ha{n}")
    CS3FIRST = opt.get("cs3first", 1)
    g.wait(vm="w31")
    if not CS3FIRST: poll_check(g, 16, "pollX")
    g("s_barrier")
    g.ts("w3 landed")
    g.forget()
    g(f"s_cmp_ge_u32 s{sU14}, 14\ns_cbranch_scc1 Lp3idle")
    vm_at_split = list(g.vm)
    aP = V(64); c4 = V(4); st = V(16); cs = V(16); gt = V(16); pk = V(8)
    aFR = 192
    def w3_read(n, areg, t, tag):
        return cat(g.Ids(f"ds_read_b64_tr_b16 {ar(aFR+4*(n%8)+2*e,2)}, v{areg} offset:{t*2048+512*e}", tag) for e in range(2))
    xl = []
    for t in range(32):
        if t % 4 == 0: xl += g.I(f"s_lshr_b32 s{sA0}, s{sW1Ks + t//4}, 4")
        xl += g.Ivm(f"buffer_load_dwordx4 {ar(64+4*t,4)}, v{vAX}, s[{sWS}:{sWS+3}], s{sA0} offen offset:{(t%4)*1024} sc1", f"x{t}")
    for f in range(16): xl += g.Ivm(f"buffer_load_dword v{st+f}, v{vSTL}, s[{sWS}:{sWS+3}], 0 offen offset:{f*256} sc1", "st")
    D = 5
    def cs3(fill):
        g.run(cat(w3_read(t, v3 + 4, t, f"s{t}") for t in range(D)))
        main = [(lambda u=u: (g.wait(lg=f"s{u}"), MF16(g, vr(c4, 4), ar(aFR + 4 * (u % 8), 4), vr(vSEL, 4), "0" if u == 0 else None))) for u in range(32)]
        rd = cat(w3_read(t, v3 + 4, t, f"s{t}") for t in range(D, 32))
        return g.weave(main, [(rd, 2.0), fill], flush=False)[1]
    NX = opt.get("nx", 15)
    if CS3FIRST: g.run(cs3((cat(w4_dma(u) for u in range(6)), 0.6)))
    else:
        g.run(xl[:NX])
        xl = cs3((xl[NX:], opt.get("rx", 0.0)))
    g(f"s_mov_b32 exec_lo, 0x00030003\ns_mov_b32 exec_hi, 0x00030003")
    g.ds(f"ds_write_b128 v{vCW}, {vr(c4,4)}")
    g("s_mov_b64 exec, -1")
    g.wait(vm="stO", lg="all")
    if CS3FIRST: poll_check(g, 16, "pollX")
    g("s_barrier")
    if CS3FIRST: g.run(xl[:NX]); xl = xl[NX:]
    signal(g, vPLO)
    g.ts("cs3 done"); g.forget()
    seq = [(t, b) for t in range(32) for b in (0, 1)] + [(t, b) for t in range(32) for b in (2, 3)]
    def p3_main(u):
        t, b = seq[u]
        return lambda: (g.wait(vm=f"x{t}" if b == 0 else None, lg=f"s{u|1}" if u % 2 == 0 else None), MF32(g, vr(aP + 16 * b, 16), ar(aFR + 4 * (u % 8), 4), ar(64 + 4 * t, 4), "0" if t == 0 else None))
    def p3_rd(lo, hi): return cat(w3_read(n, v3 + seq[n][1], seq[n][0], f"s{n}") for n in range(lo, hi))
    D = 6
    g.run(p3_rd(0, D))
    if not CS3FIRST: xl += cat(w4_dma(u) for u in range(6))
    g.weave([p3_main(u) for u in range(64)], [(p3_rd(D, 64), 2.0), (xl, opt.get("rxl", 0.65))])
    g.ts("p3 half")
    g("s_barrier")
    def csr(b): return [(lambda q=q: g.ds(f"ds_read_b128 {vr(cs+4*q,4)}, v{vCR} offset:{128*b+16*q}", "cs")) for q in range(4)]
    def epi(b0):
        E = []
        for b in (b0, b0 + 1):
            E.append(lambda: g.wait(lg="cs"))
            N = valu_main(g, norm_pk(aP + 16 * b, cs, st, 16))
            E += N[:8]
            if b < 3: E += csr(b + 1)
            E += N[8:]
            E += valu_main(g, gelu_pk([aP + 16 * b + 2 * k for k in range(8)], gt))
            for u in range(2):
                E += valu_main(g, [f"v_cvt_pk_bf16_f32 v{pk+k}, v{aP+16*b+2*k}, v{aP+16*b+2*k+1}" for k in range(4 * u, 4 * u + 4)])
                E.append(lambda b=b, u=u: g.vmem(f"buffer_store_dwordx4 {vr(pk+4*u,4)}, v{vSH+b//2}, s[{sWS}:{sWS+3}], 0 offen offset:{(b%2)*2048+512*u} sc1", f"stH{b//2}"))
        return E
    for f in csr(0): f()
    g.wait(vm="st")
    for k in range(2, 16, 2): g(f"v_pk_add_f32 {vr(st,2)}, {vr(st,2)}, {vr(st+k,2)}")
    g(f"v_add_f32 v{st}, v{st}, v{st+1}\nv_mul_f32 v{st}, {fl(1/512)}, v{st}\nv_mov_b32 v{st+1}, v{st}\nv_permlane32_swap_b32 v{st}, v{st+1}")
    g(f"v_fma_f32 v{st+1}, -v{st}, v{st}, v{st+1}\nv_max_f32 v{st+1}, 0, v{st+1}\nv_add_f32 v{st+1}, {fl(EPS)}, v{st+1}\nv_rsq_f32 v{st+1}, v{st+1}")
    E = epi(0)
    rest = g.weave(E, [(poll_issue(g, vPLO, "pollO") + wol, opt.get("rwo", 0.2))], flush=False)[0]
    g.ts("h3a stored")
    g.run(p3_rd(64, 64 + D))
    poll_check(g, 8, "pollO"); g("s_barrier")
    NA = opt.get("na", 20)
    f1 = rest + ol
    rd = p3_rd(64 + D, 128)
    r = g.weave([p3_main(u) for u in range(64, 64 + NA)], [(rd, 2.0), (f1, 0.75)], flush=False)
    g.wait(vm="stH0"); g("s_barrier"); signal(g, vPLA)
    g.ts("h3a published")
    NB = opt.get("nb", 52)
    r = g.weave([p3_main(u) for u in range(64 + NA, 64 + NB)], [(r[0], 2.0), (r[1], 0.75)], flush=False)
    g.weave([p3_main(u) for u in range(64 + NB, 128)], [(r[0], 2.0), (r[1], 0.75)])
    g.ts("p3 mfma done")
    g("s_barrier")
    NH0 = opt.get("nh0", 8)
    f2 = cat(w4_dma(6 + i) for i in range(16))
    E = epi(2)
    iPA = int(len(E) * opt.get("ipa", 0.5))
    rest2 = g.weave(E[:iPA], [(f2, opt.get("rf2", 0.2))], flush=False)[0]
    g.run(poll_issue(g, vPLA, "pollA"))
    rest2 = g.weave(E[iPA:], [(rest2, opt.get("rf2", 0.2))], flush=False)[0]
    g.ts("h3b stored")
    g.run(rest2)
    vm_active = list(g.vm)
    g.label("Lp3join")
    keep = g.lines; g.lines = []
    g.label("Lp3idle")
    g.vm = vm_at_split
    g.wait(vm="stO"); g("s_barrier"); signal(g, vPLO)
    g.run(cat(w4_dma(u) for u in range(22)) + wol)
    g.run(poll_issue(g, vPLO, "pollO")); poll_check(g, 8, "pollO", sleep=16); g("s_barrier")
    g.run(ol)
    g.run(poll_issue(g, vPLA, "pollA")); poll_check(g, 14, "pollA", sleep=opt.get("isleep", 32))
    g.wait(vm="all")
    g("s_branch Lp3join")
    g.tail.append("\n".join(g.lines)); g.lines = keep
    g.vm = vm_active
    V.reset(PERSIST)
    g.forget()
    g(f"s_cmp_ge_u32 s{sU14}, 14\ns_cselect_b32 s{sSIGB}, 0x80000000, s{sSIG}")
    g.wait(vm="wo")
    MCA = opt.get("mca", 0)
    if MCA == 0: poll_check(g, 14, "pollA")
    g("s_barrier")
    if MCA == 0: g.ts("h3a visible")
    lds_of = lambda m: 4096 * m if m < 16 else W4L(m - 16)
    act_of = lambda m: ar(4 * m, 4) if m < 16 else ar(hreg(m - 16), 4)
    atag = lambda m: f"a{m}" if m < 16 else f"ha{m-16}"
    g.run(t2_reads(lds_of(0), 0, "w0") + t2_reads(lds_of(1), 1, "w1"))
    LA = opt.get("la", 22)
    bounds = [0, 6, 14, 22, 30, 36, 44, 52, 58, 64, 72]
    MPUB = opt.get("mpub", 6); MPOLL = opt.get("mpoll", 22); MCHK = opt.get("mchk", 30)
    nw = 22
    nh = 0
    landed = -1
    for lo, hi in zip(bounds[:-1], bounds[1:]):
        if lo > 0:
            need = min(55, hi + 1 - 16)
            tags = []
            if need > landed and need >= 0: tags.append(f"f{need}"); landed = need
            if lo == MPUB: tags.append("stH1")
            if tags: g.wait(vm=tags)
            if lo == MCA: poll_check(g, 14, "pollA")
            if lo == MCHK: poll_check(g, 14, "pollB")
            g("s_barrier")
            if lo == MCA: g.ts("h3a visible")
            if lo == MCHK: g.ts("h3b visible")
            if lo == MPUB: signal(g, vPLB, sSIGB); g.ts("h3b published")
        fw = []
        while nw < 56 and nw - 22 < lo: fw += w4_dma(nw); nw += 1
        fh = []
        lim = min(56 if lo >= MCHK else 28 if lo >= MCA else 0, hi - 16 + LA)
        while nh < lim and (nh < 40 or nh - 40 < lo - 1):
            fh += hl(nh) + hl(nh + 1); nh += 2
        if lo == MPOLL: fh += poll_issue(g, vPLB, "pollB")
        mer = []
        while fw or fh:
            mer += fh[:3]; fh = fh[3:]
            mer += fw[:6]; fw = fw[6:]
        main = []; rd = []
        for m in range(lo, hi):
            main += t2_mfma(m % 4, act_of(m), f"w{m}", atag(m), None, "0" if m == 0 else None)
            if m + 2 < 72: rd += t2_reads(lds_of(m + 2), (m + 2) % 4, f"w{m+2}")
        g.weave(main, [(rd, 2.0), (mer, len(mer) / (2.0 * (hi - lo)) + 0.01)])
        if hi == 14: g.ts("wo ~done")
    assert nw == 56 and nh == 56, (nw, nh)
    g.ts("p4 mfma done")
    vRB = V(16); pk = V(8)
    reduce_send(); reduce_recv()
    for k in range(0, 16, 2):
        if k % 4 == 0: g.wait(lg=f"rb{k//4}")
        g(f"v_pk_add_f32 {vr(vRES+k,2)}, {vr(vRES+k,2)}, {vr(vRB+k,2)}")
        g(f"v_cvt_pk_bf16_f32 v{pk+k//2}, v{vRES+k}, v{vRES+k+1}")
        if k % 8 == 6: g.vmem(f"buffer_store_dwordx4 {vr(pk+4*(k//8),4)}, v{vOUT}, s[{sOUT}:{sOUT+3}], 0 offen offset:{16*(k//8)}", "out")
    if diag:
        g.wait(vm="all")
        g.ts("end")
        g(f"s_lshl_b32 s{sT1}, s2, 2\ns_add_u32 s{sT1}, s{sT1}, s{sW}\ns_lshl_b32 s{sT1}, s{sT1}, 8\ns_add_u32 s{sT1}, s{sT1}, {WS_DIAG}\nv_lshlrev_b32 v{vPV}, 2, v{vL}")
        g(f"buffer_store_dword v{vTS}, v{vPV}, s[{sWS}:{sWS+3}], s{sT1} offen")
    if pace:
        g(f"v_readlane_b32 s{sT2}, v{vTS}, 63\ns_nop 3")
        g.label("Lpace")
        g(f"s_memrealtime s[{sTS}:{sTS+1}]\ns_waitcnt lgkmcnt(0)\ns_sub_u32 s{sT1}, s{sTS}, s{sT2}\ns_cmp_lt_u32 s{sT1}, {pace}\ns_cbranch_scc1 Lpace")
    g("s_endpgm")
    for t_ in g.tail: g(t_)
    g.label("Lend")
    lines, nn = hazard.fix(g.lines, verbose=opt.get("verbose", False))
    wf = lambda body: wrap(body, 256, 256, LDS_BYTES, 512, accum=256)
    if opt.get("align", 1):
        lines, info = align.fix(lines, wf, opt.get("minrun", 3)); print("align widened/padded/left", info)
    return wf("\n".join(lines) + "\n")

if __name__ == "__main__":
    diag = 1 if "--diag" in sys.argv else 2 if "--diag2" in sys.argv else 0
    if "--ts" in sys.argv: diag = sys.argv[sys.argv.index("--ts") + 1].split(",") + ["end"]
    out = sys.argv[1]
    pace = int(sys.argv[sys.argv.index("--pace") + 1]) if "--pace" in sys.argv else None
    opt = {}
    for a_ in sys.argv[2:]:
        if "=" in a_:
            k_, v_ = a_.split("="); opt[k_] = float(v_) if "." in v_ else int(v_)
    open(out, "w").write(gen(diag, pace, opt))
    if diag: open(out + ".ts", "w").write("\n".join(TSNAMES))
    print("persist", PERSIST, "peak vgpr", V.peak)
```

```python
import sys, struct, math
from collections import deque
sys.path.insert(0, "gen")
from asmlib import *
import hazard, align

WS_G, WS_O, WS_X1, WS_H3, WS_ST, WS_CNT, WS_DIAG = 0, 2 << 20, 4 << 20, 6 << 20, 14 << 20, 15 << 20, 16 << 20
WS_SIZE = 17 << 20
CNT_H, CNT_O, CNT_X, CNT_HA, CNT_HB = 0, 32, 64, 80, 96
R = 81920
TBL = R + 73728
T_MEAN, T_RSTD, T_A2 = 0, 320, 640
CS3 = TBL + 1024
LDS_BYTES = 163840
sX, sWQKV, sWO, sW1, sW2, sW3, sW4, sOUT, sWS, sDBG, sCODE = 4, 8, 12, 16, 20, 24, 28, 32, 36, 40, 44
sW, sRQ, sC8, sRB, sU14, sROT, sW1K, sSPIN = 48, 49, 50, 51, 52, 53, 54, 55
sXK, sW1Ks, sQK = 56, 64, 72
sT0, sT1, sT2, sT3 = 80, 81, 82, 83
sM1, sM2, sM3, sMD = 84, 86, 88, 90
sMZ = 92
sTS = 96
sA0 = 98
sXB = 99
sC1 = 100
sSIG, sPOL, sSIGB = 0, 1, 53
sTAU, sTO1, sTO2 = 99, 92, 93
sCT = 3
SPINMAX = 200000
EPS = 1e-5
def f2u(x): return struct.unpack("<I", struct.pack("<f", x))[0]
def fl(x): return hex(f2u(x))
GC0 = -2 * math.sqrt(2 / math.pi) * math.log2(math.e)
GC1 = GC0 * 0.044715
QSCALE = 0.25 * math.log2(math.e)
TSNAMES = []

class Alloc:
    def __init__(self, lo, hi): self.p = lo; self.hi = hi; self.peak = lo
    def __call__(self, n=1, al=None):
        al = al or (2 if n > 1 else 1)
        self.p = (self.p + al - 1) // al * al
        r = self.p; self.p += n
        assert self.p <= self.hi, f"out of regs {self.p}"
        self.peak = max(self.peak, self.p)
        return r
    def mark(self): return self.p
    def reset(self, m): self.p = m

class G(Asm):
    def __init__(self, diag=False):
        super().__init__()
        self.vm = []; self.lg = []; self.diag = diag; self.nts = 0; self.seen = set(); self.tail = []
    def vmem(self, s, tag=None):
        self(s); self.vm.append(tag); self.seen.add(("v", tag)); assert len(self.vm) <= 63, "too many vmem outstanding"
    def ds(self, s, tag=None):
        self(s); self.lg.append(tag); self.seen.add(("l", tag))
    def _n(self, lst, tag):
        tags = tag if isinstance(tag, (list, tuple)) else [tag]
        idx = [i for i, t in enumerate(lst) if t in tags]
        if not idx: return None
        return len(lst) - 1 - idx[-1]
    def wait(self, vm=None, lg=None):
        parts = []
        for k_, t_ in (("v", vm), ("l", lg)):
            if t_ is not None and t_ != "all":
                for x_ in (t_ if isinstance(t_, (list, tuple)) else [t_]): assert (k_, x_) in self.seen, f"wait on unissued tag {x_}"
        if vm is not None:
            n = (0 if self.vm else None) if vm == "all" else self._n(self.vm, vm)
            if n is not None:
                parts.append(f"vmcnt({n})"); self.vm = self.vm[len(self.vm) - n:] if n else []
        if lg is not None:
            n = (0 if self.lg else None) if lg == "all" else self._n(self.lg, lg)
            if n is not None:
                n = min(n, 15); parts.append(f"lgkmcnt({n})"); self.lg = self.lg[len(self.lg) - n:] if n else []
        if parts: self("s_waitcnt " + " ".join(parts))
    def forget(self):
        self.seen = {x for x in self.seen if x[0] == "v" or x[1] in self.lg or x[1] == "cs"}
    def ts(self, name):
        if getattr(self, "pacets", None) == name:
            self(f"s_memrealtime s[{sTS}:{sTS+1}]\ns_waitcnt lgkmcnt(0)\nv_writelane_b32 v{vTS}, s{sTS}, 62"); self.lg = []
        if not self.diag or (self.diag == 2 and name != "end") or (isinstance(self.diag, list) and name not in self.diag): return
        self.c(f"TS {self.nts} {name}")
        self(f"s_memtime s[{sTS}:{sTS+1}]\ns_waitcnt lgkmcnt(0)\nv_writelane_b32 v{vTS}, s{sTS}, {self.nts}")
        self.lg = []
        TSNAMES.append(name); self.nts += 1
    def I(self, s, cost=1): return [(lambda s=l: self(s), cost) for l in s.strip().split("\n")]
    def Ids(self, s, tag=None): return [(lambda: self.ds(s, tag), 1)]
    def Ivm(self, s, tag=None): return [(lambda: self.vmem(s, tag), 1)]
    def Idma(self, srd, voff, soff, lds, tag):
        sreg, imm = soff
        lreg, limm = lds if isinstance(lds, tuple) else (sW1K, lds)
        it = self.I(f"s_add_u32 m0, s{lreg}, {limm}")
        if sreg is None: it += self.I(f"s_mov_b32 s{sT0}, {imm}"); so = f"s{sT0}"
        elif imm == 0: so = f"s{sreg}"
        else: it += self.I(f"s_add_u32 s{sT0}, s{sreg}, {imm}"); so = f"s{sT0}"
        it += self.Ivm(f"buffer_load_dwordx4 v{voff}, s[{srd}:{srd+3}], {so} offen lds", tag)
        return it
    def run(self, items):
        for f, c in items: f()
    def weave(self, main, fills, flush=True):
        qs = [[deque(it), rate, 0.0] for it, rate in fills]
        for m in main:
            m()
            for q in qs:
                q[2] += q[1]
                while q[0] and q[2] >= q[0][0][1] - 1e-9:
                    f, c = q[0].popleft(); f(); q[2] -= c
        rest = [list(q[0]) for q in qs]
        if flush:
            for r in rest: self.run(r)
        return rest

V = Alloc(0, 256)
v0_ = V(); vL = V(); vW1024 = V(); vW3072 = V(); vW3584 = V()
vTR16a = V(); vTR16b = V(); vTS = V()
vXr0 = V(2); vXh0 = V(2); vL128 = V(); vDUM = V()
vAG = V(); vAO = V(); vAX = V(); vAH = V(2); vSTL = V()
vSX = V(); vSS = V(); vSH = V(2)
vONE = V(4); vSEL = V(4); vGC0 = V(2); vPA = V(2); vXS = V(2); vXT = V(8)
vRES = V(16); vAC1 = V(16)
vGAo = V(2); vOUT = V(); vT2 = V(6); v3 = V(5); vPLH = V(); vPLX = V(); vPLO = V(); vPLA = V(); vPLB = V(); vPV = V()
vTC = V(); vTRW = V(); vRD = V(2); vCW = V(); vCR = V(); vSG = V(); vPG = V()
vBI = V(16); vAM = V(8)
PERSIST = V.mark()
sW4T = [72, 73, 74, 75, 76, 77, 78, 79, 84, 85, 86, 87, 88, 89]

def MF16(g, d, a, b, c=None): g(f"v_mfma_f32_16x16x32_bf16 {d}, {a}, {b}, {c if c is not None else d}")
def MF32(g, d, a, b, c=None): g(f"v_mfma_f32_32x32x16_bf16 {d}, {a}, {b}, {c if c is not None else d}")

def gelu_pk(regs, tmp):
    t = [tmp + 2 * i for i in range(len(regs))]
    L = []
    for i, r in enumerate(regs): L.append(f"v_pk_mul_f32 {vr(t[i],2)}, {vr(r,2)}, {vr(r,2)}")
    for i, r in enumerate(regs): L.append(f"v_pk_fma_f32 {vr(t[i],2)}, {vr(t[i],2)}, s[{sC1}:{sC1+1}], {vr(vGC0,2)}")
    for i, r in enumerate(regs): L.append(f"v_pk_mul_f32 {vr(t[i],2)}, {vr(t[i],2)}, {vr(r,2)}")
    for i, r in enumerate(regs): L += [f"v_exp_f32 v{t[i]}, v{t[i]}", f"v_exp_f32 v{t[i]+1}, v{t[i]+1}"]
    for i, r in enumerate(regs): L.append(f"v_pk_add_f32 {vr(t[i],2)}, {vr(t[i],2)}, 1.0 op_sel_hi:[1,0]")
    for i, r in enumerate(regs): L += [f"v_rcp_f32 v{t[i]}, v{t[i]}", f"v_rcp_f32 v{t[i]+1}, v{t[i]+1}"]
    for i, r in enumerate(regs): L.append(f"v_pk_mul_f32 {vr(r,2)}, {vr(r,2)}, {vr(t[i],2)}")
    return L

def norm_pk(acc, cs, st, n):
    L = []
    for k in range(0, n, 2):
        L.append(f"v_pk_fma_f32 {vr(acc+k,2)}, {vr(cs+k,2)}, {vr(st,2)}, {vr(acc+k,2)} op_sel:[0,0,0] op_sel_hi:[1,0,1] neg_lo:[0,1,0] neg_hi:[0,1,0]")
    for k in range(0, n, 2):
        L.append(f"v_pk_mul_f32 {vr(acc+k,2)}, {vr(acc+k,2)}, {vr(st,2)} op_sel:[0,1] op_sel_hi:[1,1]")
    return L

def valu_main(g, L): return [(lambda s=s: g(s)) for s in L]

def signal(g, addr_v, soob=None):
    g(f"v_or_b32 v{vSG}, s{soob or sSIG}, v{addr_v}\ns_mov_b64 exec, 1")
    g.vmem(f"buffer_atomic_add v{vPA+1}, v{vSG}, s[{sWS}:{sWS+3}], 0 offen sc1", "sig")
    g("s_mov_b64 exec, -1")

def poll_issue(g, addr_v, tag, srd=None):
    srd = srd or sWS
    return g.I(f"v_or_b32 v{vPG}, s{sPOL}, v{addr_v}") + g.Ivm(f"buffer_load_dword v{vPV}, v{vPG}, s[{srd}:{srd+3}], 0 offen sc1", tag)

def poll_check(g, target, tag, sleep=4, srd=None):
    srd = srd or sWS
    lab = g.newlabel("Lpoll"); done = g.newlabel("Lpolld")
    g.wait(vm=tag)
    g(f"v_or_b32 v{vPV}, s{sPOL}, v{vPV}\nv_cmp_gt_u32 vcc, {target}, v{vPV}\ns_mov_b32 s{sSPIN}, {SPINMAX}\ns_nop 3\ns_cbranch_vccnz {lab}")
    g.label(done)
    g.tail.append(f"{lab}:\ns_sleep {sleep}\nbuffer_load_dword v{vPV}, v{vPG}, s[{srd}:{srd+3}], 0 offen sc1\ns_sub_u32 s{sSPIN}, s{sSPIN}, 1\ns_cbranch_scc1 {done}\ns_waitcnt vmcnt(0)\n"
                  f"v_cmp_gt_u32 vcc, {target}, v{vPV}\ns_nop 4\ns_cbranch_vccnz {lab}\ns_branch {done}")

def gen(diag=False, pace=None, opt=None):
    opt = opt or {}
    TSNAMES.clear()
    V.reset(PERSIST)
    g = G(diag); g.pacets = opt.get("pacets")
    cat = lambda its: sum(its, [])
    g("s_cmp_ge_u32 s2, 256\ns_cbranch_scc1 Lend")
    SRDS = ((sX, 0, 2 << 20), (sW1, 32, 1 << 19), (sWQKV, 8, 3 << 19), (sWS, 80, WS_SIZE), (sDBG, 72, 256), (sW2, 40, 1 << 19), (sW3, 48, 7 << 18), (sW4, 56, 7 << 18), (sWO, 16, 1 << 19), (sOUT, 64, 2 << 20))
    for srd, off, n in SRDS: g(f"s_load_dwordx2 s[{srd}:{srd+1}], s[0:1], {off}")
    if diag or pace: g(f"v_mov_b32 v{vTS}, 0\ns_memrealtime s[{sMZ}:{sMZ+1}]\ns_memtime s[{sMZ+2}:{sMZ+3}]")
    g(f"s_getpc_b64 s[{sCODE}:{sCODE+1}]")
    g.label("Lpc")
    g(f"s_mov_b32 s{sCODE+2}, Lend-Lpc\ns_mov_b32 s{sCODE+3}, 0x20000")
    t0, t1, t2, t3 = V(), V(), V(), V()
    c_, g_, e_, q_, lp = V(), V(), V(), V(), V()
    KEEP = V.mark()
    vXd0, vXd1, vXh = V(), V(), V()
    g(f"v_and_b32 v{vL}, 63, v0\nv_lshrrev_b32 v{t0}, 6, v0\nv_lshlrev_b32 v{t1}, 7, v0\nv_readfirstlane_b32 s{sW}, v{t0}")
    g(f"s_lshl_b32 s{sCT}, s2, 12\ns_and_b32 s{sCT}, s{sCT}, 0x8000")
    g.vmem(f"buffer_load_dword v{vDUM}, v{t1}, s[{sCODE}:{sCODE+3}], s{sCT} offen", "touch")
    g(f"s_lshr_b32 s{sT0}, s2, 3")
    g(f"s_and_b32 s{sT1}, s2, 6\ns_lshl_b32 s{sT1}, s{sT1}, 2\ns_lshr_b32 s{sT2}, s{sT0}, 2\ns_add_u32 s{sRQ}, s{sT1}, s{sT2}")
    g(f"s_and_b32 s{sT1}, s2, 1\ns_lshl_b32 s{sT2}, s{sT1}, 2\ns_and_b32 s{sC8}, s{sT0}, 3\ns_add_u32 s{sC8}, s{sC8}, s{sT2}")
    g(f"s_lshl_b32 s{sT2}, s{sC8}, 1\ns_add_u32 s{sROT}, s{sRQ}, s{sT2}\ns_add_u32 s{sROT}, s{sROT}, s{sT1}\ns_and_b32 s{sROT}, s{sROT}, 7")
    g(f"s_lshl_b32 s{sW1K}, s{sW}, 10\ns_lshl_b32 s{sXB}, s{sW}, 14")
    for srd, off, n in SRDS[:2]: g(f"s_mov_b32 s{srd+2}, {n}\ns_mov_b32 s{srd+3}, 0x20000")
    def rot_tab(i): return f"s_add_u32 s{sT1}, s{sROT}, {i}\ns_and_b32 s{sT1}, s{sT1}, 7\ns_lshl_b32 s{sXK+i}, s{sT1}, 7\ns_lshl_b32 s{sW1Ks+i}, s{sT1}, 16"
    g(f"s_lshl_b32 s{sXK}, s{sROT}, 7\ns_lshl_b32 s{sW1Ks}, s{sROT}, 16")
    g(f"v_lshrrev_b32 v{t0}, 3, v{vL}\nv_and_b32 v{t1}, 7, v{vL}")
    g(f"v_lshrrev_b32 v{g_}, 4, v{vL}\nv_xor_b32 v{t2}, v{g_}, v{t1}\nv_lshlrev_b32 v{t2}, 4, v{t2}")
    g(f"v_lshl_add_u32 v{t2}, v{t0}, 11, v{t2}")
    g(f"s_lshr_b32 s{sT1}, s{sW}, 1\ns_lshl_b32 s{sT1}, s{sT1}, 5\ns_and_b32 s{sT2}, s{sW}, 1\ns_add_u32 s{sT1}, s{sT1}, s{sT2}")
    g(f"s_lshl_b32 s{sT3}, s{sRQ}, 6\ns_add_u32 s{sT1}, s{sT1}, s{sT3}\ns_lshl_b32 s{sT1}, s{sT1}, 10")
    g(f"v_add_u32 v{vXd0}, s{sT1}, v{t2}\nv_xor_b32 v{vXd1}, 64, v{vXd0}\nv_add_u32 v{vXd1}, 16384, v{vXd1}")
    g(f"s_add_u32 s{sT1}, s{sT3}, s{sT2}\ns_sub_u32 s{sT1}, s{sT1}, 16\ns_lshl_b32 s{sT1}, s{sT1}, 10\ns_lshl_b32 s{sT3}, s{sT2}, 6")
    g(f"v_xor_b32 v{vXh}, s{sT3}, v{t2}\nv_add_u32 v{vXh}, s{sT1}, v{vXh}")
    g(f"v_lshlrev_b32 v{t3}, 1, v{t0}\nv_and_b32 v{t3}, 4, v{t3}\nv_xor_b32 v{t3}, v{t3}, v{t1}\ns_lshl_b32 s{sT2}, s{sT2}, 1\nv_xor_b32 v{t3}, s{sT2}, v{t3}\nv_lshlrev_b32 v{t3}, 4, v{t3}")
    g(f"s_lshl_b32 s{sT1}, s{sW}, 3\nv_add_u32 v{t2}, s{sT1}, v{t0}")
    g(f"s_lshl_b32 s{sT1}, s{sC8}, 7\nv_add_u32 v{t0}, s{sT1}, v{t3}")
    g(f"v_lshl_add_u32 v{vW1024}, v{t2}, 10, v{t0}")
    g("s_waitcnt lgkmcnt(0)")
    if diag or pace: g(f"v_writelane_b32 v{vTS}, s{sMZ}, 63\nv_writelane_b32 v{vTS}, s{sMZ}, 62\nv_writelane_b32 v{vTS}, s{sMZ+2}, 0")
    if diag: TSNAMES.append("entry"); g.nts = 1
    g.ts("kernarg")
    W1L = lambda i: R + 8192 * (i + 1)
    def p1a_dma(i):
        it = g.Idma(sX, vXd0, (sXK + i, 0), (sXB, i * 2048), f"c{i}") + g.Idma(sX, vXd1, (sXK + i, 0), (sXB, i * 2048 + 1024), f"c{i}")
        for t in range(2): it += g.Idma(sW1, vW1024, (sW1Ks + i, t * 32768), W1L(i) + t * 4096, f"c{i}")
        return it
    NPRE = opt.get("npre", 2)
    g.run(p1a_dma(0))
    for i in range(1, NPRE): g(rot_tab(i)); g.run(p1a_dma(i))
    for i in range(NPRE, 8): g(rot_tab(i))
    g(f"s_lshr_b32 s{sT1}, s{sW}, 1\ns_lshl_b32 s{sT2}, s{sT1}, 13\ns_and_b32 s{sT3}, s{sW}, 1\ns_lshl_b32 s{sT3}, s{sT3}, 10\ns_add_u32 s{sA0}, s{sT2}, s{sT3}")
    g(f"s_lshl_b32 s{sT1}, s{sT1}, 9\ns_mov_b32 exec_lo, 0xffffff00")
    for q in range(4):
        it = g.Idma(sX, vXh, (sT2, 0), (sA0, 65536 + q * 2048), "c0")
        g.run(it[:1]); g(f"s_xor_b32 s{sT2}, s{sXK+q}, s{sT1}"); g.run(it[1:])
    g("s_mov_b32 exec_lo, -1")
    for srd, off, n in SRDS[2:]: g(f"s_mov_b32 s{srd+2}, {n}\ns_mov_b32 s{srd+3}, 0x20000")
    g(f"v_lshlrev_b32 v{vL128}, 7, v{vL}")
    def touch(srd, nl, atomic=False):
        if atomic:
            it = touch(srd, nl); return [(lambda: g.run(it), 1)]
        return g.I(f"s_lshl_b32 s{sT3}, s2, 2\ns_add_u32 s{sT3}, s{sT3}, s{sW}\ns_mul_i32 s{sT3}, s{sT3}, {nl*128}\ns_bfm_b64 exec, {nl}, 0") + \
               g.Ivm(f"buffer_load_dword v{vDUM}, v{vL128}, s[{srd}:{srd+3}], s{sT3} offen", "touch") + g.I("s_mov_b64 exec, -1")
    if opt.get("touch1", 0) == 1: g.run(touch(sWQKV, 12))
    g(f"s_or_b32 s{sT1}, s2, s{sW}\ns_cbranch_scc0 Lz")
    g.label("Lnz")
    g.tail.append(f"Lz:\nv_add_u32 v{vPV}, {WS_CNT}, v{vL128}\nv_mov_b32 v{vPA}, 0\ns_mov_b32 s{sT1}, 8192\n"
                  f"buffer_store_dword v{vPA}, v{vPV}, s[{sWS}:{sWS+3}], 0 offen sc1\nbuffer_store_dword v{vPA}, v{vPV}, s[{sWS}:{sWS+3}], s{sT1} offen sc1\ns_branch Lnz")
    S = []
    def s(x): S.extend(x.split("\n"))
    vXp = V(8); vTP = V(4); vGAh = V(2); vXTa = V(2); vXSa = V()
    s(f"v_mul_u32_u24 v{vW3072}, 3072, v{t2}\nv_add_u32 v{vW3072}, v{vW3072}, v{t0}")
    s(f"s_lshr_b32 s{sRB}, s{sRQ}, 1\ns_and_b32 s{sT1}, s2, 1\ns_mul_i32 s{sT1}, s{sT1}, 7\ns_bfe_u32 s{sT2}, s2, 0x30003\ns_add_u32 s{sU14}, s{sT1}, s{sT2}\ns_cmp_eq_u32 s{sT2}, 7\ns_cselect_b32 s{sU14}, 14, s{sU14}")
    s(f"s_lshl_b32 s{sT1}, s{sU14}, 8\nv_add_u32 v{t0}, s{sT1}, v{t3}\nv_mul_u32_u24 v{vW3584}, 3584, v{t2}\nv_add_u32 v{vW3584}, v{vW3584}, v{t0}")
    for i in range(8): s(f"s_mul_i32 s{sQK+i}, s{sW1Ks+i}, 3")
    for i in range(4): s(f"v_mov_b32 v{vONE+i}, 0x3f803f80")
    s(f"v_lshrrev_b32 v{t0}, 3, v{vL}\nv_lshlrev_b32 v{t0}, 11, v{t0}\nv_lshl_add_u32 v{t0}, v{t1}, 4, v{t0}\nv_add_u32 v{t0}, 65536, v{t0}")
    S.append(("ds", f"ds_write_b128 v{t0}, {vr(vONE,4)}")); S.append(("ds", f"ds_write_b128 v{t0}, {vr(vONE,4)} offset:1024"))
    s(f"v_mov_b32 v{vPA}, 0\nv_mov_b32 v{vPA+1}, 1")
    s(f"v_and_b32 v{c_}, 15, v{vL}\nv_bfe_u32 v{e_}, v{vL}, 2, 2\nv_and_b32 v{q_}, 3, v{vL}")
    s(f"v_lshrrev_b32 v{t0}, 1, v{c_}\nv_xor_b32 v{t0}, v{t0}, v{g_}\nv_lshlrev_b32 v{t0}, 4, v{t0}\nv_lshl_add_u32 v{vXr0}, v{c_}, 7, v{t0}")
    s(f"v_xor_b32 v{vXr0+1}, 64, v{vXr0}\nv_add_u32 v{vXh0}, 65536, v{vXr0}\nv_add_u32 v{vXh0+1}, 65536, v{vXr0+1}")
    s(f"v_lshrrev_b32 v{t0}, 1, v{q_}\ns_lshl_b32 s{sT1}, s{sW}, 1\nv_add_u32 v{t0}, s{sT1}, v{t0}")
    s(f"v_lshlrev_b32 v{t1}, 1, v{e_}\nv_and_b32 v{t1}, 4, v{t1}\nv_and_b32 v{t2}, 1, v{g_}\nv_lshl_add_u32 v{t2}, v{t2}, 1, v{t1}\nv_xor_b32 v{t0}, v{t0}, v{t2}")
    s(f"v_lshl_add_u32 v{t2}, v{g_}, 3, v{e_}\nv_lshlrev_b32 v{t2}, 7, v{t2}\nv_lshl_add_u32 v{t0}, v{t0}, 4, v{t2}\nv_and_b32 v{t2}, 1, v{q_}\nv_lshl_add_u32 v{t0}, v{t2}, 3, v{t0}")
    s(f"v_add_u32 v{vTR16a}, {R}, v{t0}\nv_add_u32 v{vTR16b}, {R+36864}, v{t0}")
    for i in range(4):
        s(f"s_xor_b32 s{sT1}, s{sW}, {i}\ns_lshl_b32 s{sT1}, s{sT1}, 14\nv_add_u32 v{vXp+2*i}, s{sT1}, v{vXr0}\nv_add_u32 v{vXp+2*i+1}, s{sT1}, v{vXr0+1}")
    n_s1a = len(S)
    s(f"v_mov_b32 v{vGC0}, {fl(GC0)}\nv_mov_b32 v{vGC0+1}, {fl(GC0)}\ns_mov_b32 s{sC1}, {fl(GC1)}\ns_mov_b32 s{sC1+1}, {fl(GC1)}")
    s(f"s_mov_b32 s{sM1}, 0x22222222\ns_mov_b32 s{sM1+1}, 0x22222222\ns_mov_b32 s{sM2}, 0x44444444\ns_mov_b32 s{sM2+1}, 0x44444444")
    s(f"s_mov_b32 s{sM3}, 0x88888888\ns_mov_b32 s{sM3+1}, 0x88888888\ns_mov_b32 s{sMD}, 0x00F0000F\ns_mov_b32 s{sMD+1}, 0xF0000F00")
    s(f"v_lshlrev_b32 v{vTC}, 2, v{c_}\nv_add_u32 v{vTC}, {TBL}, v{vTC}")
    for i in range(4): s(f"s_xor_b32 s{sT1}, s{sW}, {i}\ns_lshl_b32 s{sT1}, s{sT1}, 6\nv_add_u32 v{vTP+i}, s{sT1}, v{vTC}")
    def act_store_addr(dst, P, natural, shift, base):
        a0, a1, a2 = t0, t1, t2
        s(f"v_bfe_u32 v{a0}, v{vL}, 4, 1\nv_add_u32 v{a0}, {2*P}, v{a0}")
        if not natural: s(f"v_xor_b32 v{a0}, s{sW}, v{a0}")
        s(f"v_and_b32 v{a1}, 1, v{a0}\nv_lshrrev_b32 v{a0}, 1, v{a0}\nv_lshl_add_u32 v{a0}, v{a0}, 5, v{a1}\nv_lshl_add_u32 v{a0}, v{c_}, 1, v{a0}")
        s(f"s_lshl_b32 s{sT1}, s{sRQ}, 6")
        if shift: s(f"s_add_u32 s{sT1}, s{sT1}, s{sT3}")
        s(f"v_add_u32 v{a0}, s{sT1}, v{a0}")
        if shift: s(f"v_cmp_gt_u32 s[{sMZ+2*P}:{sMZ+2*P+1}], s{sT2}, v{a0}\nv_and_b32 v{a0}, 2047, v{a0}")
        s(f"v_lshrrev_b32 v{a1}, 5, v{a0}\nv_lshlrev_b32 v{a1}, 15, v{a1}\nv_and_b32 v{a2}, 1, v{a0}\nv_lshl_add_u32 v{a1}, v{a2}, 8, v{a1}\nv_bfe_u32 v{a2}, v{a0}, 1, 4\nv_lshl_add_u32 v{a1}, v{a2}, 4, v{a1}")
        s(f"v_lshrrev_b32 v{a2}, 5, v{vL}\nv_lshl_add_u32 v{a1}, v{a2}, 9, v{a1}")
        s(f"s_lshl_b32 s{sT1}, s{sC8}, 2\ns_add_u32 s{sT1}, s{sT1}, s{sW}\ns_lshl_b32 s{sT1}, s{sT1}, 10\ns_add_u32 s{sT1}, s{sT1}, {base}\nv_add_u32 v{dst}, s{sT1}, v{a1}")
    S.append(("blk", f"s_lshr_b32 s{sT3}, s{sC8}, 2\ns_add_u32 s{sT3}, s{sT3}, 1\ns_sub_u32 s{sT2}, 0, s{sT3}\ns_bitcmp1_b32 s{sC8}, 1\ns_cselect_b32 s{sT3}, s{sT2}, s{sT3}\ns_movk_i32 s{sT2}, 2048"))
    act_store_addr(vGAh, 0, False, True, WS_G); act_store_addr(vGAh + 1, 1, False, True, WS_G)
    s(f"v_lshrrev_b32 v{t1}, 1, v{c_}\nv_lshrrev_b32 v{t2}, 5, v{vL}\nv_lshlrev_b32 v{t2}, 1, v{t2}\ns_and_b32 s{sT1}, s{sW}, 2\ns_lshl_b32 s{sT1}, s{sT1}, 1\nv_add_u32 v{t2}, s{sT1}, v{t2}")
    s(f"v_xor_b32 v{t1}, v{t1}, v{t2}\nv_lshlrev_b32 v{t1}, 4, v{t1}\nv_lshl_add_u32 v{t1}, v{c_}, 7, v{t1}\nv_bfe_u32 v{t2}, v{vL}, 4, 1\nv_lshl_add_u32 v{t1}, v{t2}, 14, v{t1}")
    s(f"s_sub_u32 s{sT1}, s{sC8}, s{sROT}\ns_and_b32 s{sT1}, s{sT1}, 7\ns_lshl_b32 s{sT1}, s{sT1}, 11\ns_and_b32 s{sT2}, s{sW}, 1\ns_lshl_b32 s{sT3}, s{sT2}, 15\ns_add_u32 s{sT1}, s{sT1}, s{sT3}\nv_add_u32 v{vXTa}, s{sT1}, v{t1}\nv_xor_b32 v{vXTa+1}, 16, v{vXTa}")
    s(f"v_and_b32 v{t0}, 31, v{vL}\nv_lshlrev_b32 v{vXSa}, 2, v{t0}\ns_lshl_b32 s{sT2}, s{sT2}, 7\ns_add_u32 s{sT2}, s{sT2}, {TBL}\nv_add_u32 v{vXSa}, s{sT2}, v{vXSa}")
    S.append(("blk", f"s_cmp_eq_u32 s{sW}, 0\ns_cselect_b32 s{sSIG}, 0, 0x80000000\ns_cmp_eq_u32 s{sW}, {opt.get('pw', 3)}\ns_cselect_b32 s{sPOL}, 0, 0x80000000"))
    S1 = S
    S = []
    s(f"v_min_u32 v{t0}, 2, v{vL}\nv_mul_u32_u24 v{t1}, v{t0}, v{t0}\nv_mul_u32_u24 v{t1}, 3, v{t1}\nv_mul_u32_u24 v{t0}, 5, v{t0}\nv_sub_u32 v{t0}, v{t1}, v{t0}\nv_ashrrev_i32 v{t0}, 1, v{t0}")
    s(f"v_add_u32 v{t0}, s{sRQ}, v{t0}\nv_and_b32 v{t0}, 31, v{t0}\nv_lshlrev_b32 v{t0}, 7, v{t0}\nv_add_u32 v{vPLH}, {WS_CNT + CNT_H*128}, v{t0}")
    for reg, sr_, base in ((vPLX, sRB, CNT_X), (vPLO, sRQ, CNT_O), (vPLA, sRB, CNT_HA), (vPLB, sRB, CNT_HB)):
        s(f"s_lshl_b32 s{sT1}, s{sr_}, 7\ns_add_u32 s{sT1}, s{sT1}, {WS_CNT + base*128}\nv_mov_b32 v{reg}, s{sT1}")
    s(f"s_lshl_b32 s{sT2}, s{sRQ}, 1\ns_and_b32 s{sT1}, s{sW}, 1\ns_add_u32 s{sT2}, s{sT2}, s{sT1}")
    s(f"s_lshr_b32 s{sT1}, s{sW}, 1\ns_lshl_b32 s{sT1}, s{sT1}, 10\nv_lshl_add_u32 v{t0}, v{vL}, 4, s{sT1}")
    s(f"s_lshl_b32 s{sT3}, s{sT2}, 15\nv_add_u32 v{vAG}, s{sT3}, v{t0}\nv_add_u32 v{vAO}, {WS_O}, v{vAG}")
    s(f"s_mul_i32 s{sT1}, s{sT2}, 114688\ns_add_u32 s{sT1}, s{sT1}, {WS_H3}\nv_add_u32 v{vAH}, s{sT1}, v{t0}\nv_add_u32 v{vAH+1}, 4096, v{vAH}")
    s(f"v_and_b32 v{t0}, 31, v{vL}\nv_lshlrev_b32 v{t0}, 4, v{t0}\nv_lshrrev_b32 v{t1}, 5, v{vL}\nv_lshl_add_u32 v{t0}, v{t1}, 10, v{t0}")
    s(f"v_lshlrev_b32 v{vOUT}, 11, v{c_}\nv_bfe_u32 v{t2}, v{vL}, 4, 1\nv_lshl_add_u32 v{vOUT}, v{t2}, 10, v{vOUT}\nv_lshl_add_u32 v{vOUT}, v{t1}, 5, v{vOUT}\nv_add_u32 v{vOUT}, s{sT3}, v{vOUT}")
    s(f"v_add_u32 v{vSX}, s{sT3}, v{t0}\ns_lshl_b32 s{sT1}, s{sC8}, 1\ns_lshr_b32 s{sT3}, s{sW}, 1\ns_add_u32 s{sT1}, s{sT1}, s{sT3}")
    s(f"s_lshl_b32 s{sT3}, s{sT1}, 6\nv_add_u32 v{vOUT}, s{sT3}, v{vOUT}\ns_lshl_b32 s{sT3}, s{sT1}, 11\ns_add_u32 s{sT3}, s{sT3}, {WS_X1}\nv_add_u32 v{vSX}, s{sT3}, v{vSX}")
    s(f"s_lshl_b32 s{sT3}, s{sT2}, 4\ns_add_u32 s{sT3}, s{sT3}, s{sT1}\ns_lshl_b32 s{sT3}, s{sT3}, 8\ns_add_u32 s{sT3}, s{sT3}, {WS_ST}\nv_lshl_add_u32 v{vSS}, v{vL}, 2, s{sT3}")
    s(f"s_lshl_b32 s{sT2}, s{sRB}, 2\ns_add_u32 s{sT2}, s{sT2}, s{sW}")
    s(f"s_lshl_b32 s{sT1}, s{sT2}, 15\ns_add_u32 s{sT1}, s{sT1}, {WS_X1}\nv_lshl_add_u32 v{vAX}, v{vL}, 4, s{sT1}")
    s(f"s_lshl_b32 s{sT1}, s{sT2}, 12\ns_add_u32 s{sT1}, s{sT1}, {WS_ST}\nv_lshl_add_u32 v{vSTL}, v{vL}, 2, s{sT1}")
    s(f"s_mul_i32 s{sT1}, s{sT2}, 114688\ns_lshl_b32 s{sT3}, s{sU14}, 13\ns_add_u32 s{sT1}, s{sT1}, s{sT3}\ns_add_u32 s{sT1}, s{sT1}, {WS_H3}\nv_add_u32 v{vSH}, s{sT1}, v{t0}\nv_add_u32 v{vSH+1}, 4096, v{vSH}")
    s(f"v_lshlrev_b32 v{vCR}, 6, v{t1}\nv_add_u32 v{vCR}, {CS3}, v{vCR}")
    s(f"v_lshlrev_b32 v{t1}, 1, v{e_}\nv_and_b32 v{t1}, 4, v{t1}")
    s(f"v_and_b32 v{t0}, 1, v{q_}\nv_and_b32 v{t2}, 1, v{g_}\nv_lshl_add_u32 v{t0}, v{t0}, 1, v{t2}")
    s(f"v_and_b32 v{t2}, 2, v{g_}\nv_add_u32 v{t3}, v{t2}, v{t1}\nv_xor_b32 v{t0}, v{t0}, v{t3}")
    s(f"v_lshl_add_u32 v{t2}, v{t2}, 2, v{e_}\nv_lshlrev_b32 v{t2}, 7, v{t2}\nv_lshl_add_u32 v{t0}, v{t0}, 4, v{t2}\nv_lshrrev_b32 v{t2}, 1, v{q_}\nv_lshl_add_u32 v{lp}, v{t2}, 3, v{t0}")
    s(f"s_lshr_b32 s{sT1}, s{sW}, 1\ns_lshl_b32 s{sT2}, s{sT1}, 6\ns_lshl_b32 s{sT1}, s{sT1}, 11\nv_xor_b32 v{vT2}, s{sT2}, v{lp}\nv_add_u32 v{vT2}, s{sT1}, v{vT2}\nv_xor_b32 v{vT2+1}, 64, v{vT2}")
    for k in (1, 2): s(f"v_add_u32 v{vT2+2*k}, {61440*k}, v{vT2}\nv_add_u32 v{vT2+2*k+1}, {61440*k}, v{vT2+1}")
    s(f"v_mov_b32 v{v3}, v{lp}\nv_xor_b32 v{v3+1}, 64, v{lp}\nv_add_u32 v{v3+2}, {R}, v{v3}\nv_add_u32 v{v3+3}, {R}, v{v3+1}")
    s(f"s_and_b32 s{sT1}, s{sW}, 1\ns_lshl_b32 s{sT1}, s{sT1}, 6\ns_lshr_b32 s{sT2}, s{sW}, 1\ns_mul_i32 s{sT2}, s{sT2}, {R}\nv_xor_b32 v{v3+4}, s{sT1}, v{lp}\nv_add_u32 v{v3+4}, s{sT2}, v{v3+4}")
    s(f"s_lshl_b32 s{sT1}, s{sW}, 12\ns_add_u32 s{sT1}, s{sT1}, 65536\nv_lshl_add_u32 v{vRD}, v{vL}, 4, s{sT1}\nv_xor_b32 v{vRD+1}, 8192, v{vRD}")
    n_s2a = len(S)
    s(f"v_lshlrev_b32 v{vTRW}, 4, v{g_}\nv_add_u32 v{vTRW}, {TBL}, v{vTRW}")
    act_store_addr(vGAo, 0, True, False, WS_O); s(f"v_add_u32 v{vGAo+1}, 32768, v{vGAo}")
    s(f"v_and_b32 v{t0}, 1, v{g_}\nv_lshlrev_b32 v{t0}, 6, v{t0}\nv_lshl_add_u32 v{t0}, v{c_}, 5, v{t0}\nv_lshrrev_b32 v{t2}, 1, v{g_}\nv_lshl_add_u32 v{t0}, v{t2}, 4, v{t0}")
    s(f"s_lshl_b32 s{sT1}, s{sW}, 7\ns_add_u32 s{sT1}, s{sT1}, {CS3}\nv_add_u32 v{vCW}, s{sT1}, v{t0}")
    s(f"v_xor_b32 v{t0}, v{c_}, v{g_}\nv_and_b32 v{t0}, 1, v{t0}\nv_add_u32 v{t0}, -1, v{t0}")
    for i in range(4): s(f"v_and_b32 v{vSEL+i}, v{vONE}, v{t0}")
    s(f"v_lshlrev_b32 v{t1}, 2, v{g_}\nv_sub_u32 v{t0}, v{c_}, v{t1}")
    S.append(("blk", f"s_cmp_eq_u32 s{sRQ}, 0\ns_cselect_b32 s{sT3}, {fl(-1e30)}, 0"))
    s(f"v_sub_u32 v{lp}, 1, v{g_}\nv_ashrrev_i32 v{lp}, 31, v{lp}")
    NEG = fl(-1e30)
    for r in range(4):
        s(f"v_subrev_u32 v{t1}, {r}, v{t0}")
        s(f"v_sub_u32 v{t2}, 7, v{t1}\nv_or_b32 v{t2}, v{t2}, v{t1}\nv_ashrrev_i32 v{t2}, 31, v{t2}\nv_and_b32 v{vBI+r}, {NEG}, v{t2}")
        s(f"v_sub_u32 v{t2}, -9, v{t1}\nv_ashrrev_i32 v{t2}, 31, v{t2}\nv_and_b32 v{vBI+4+r}, {NEG}, v{t2}\nv_or_b32 v{vBI+12+r}, s{sT3}, v{vBI+4+r}")
        s(f"v_not_b32 v{t2}, v{t1}\nv_ashrrev_i32 v{t2}, 31, v{t2}\nv_or_b32 v{t2}, v{t2}, v{lp}\nv_and_b32 v{t2}, {NEG}, v{t2}\nv_or_b32 v{vBI+8+r}, s{sT3}, v{t2}")
    s(f"s_mov_b32 s{sT1}, 0x07060302")
    for t in range(4):
        for k in range(2):
            s(f"v_ashrrev_i32 v{t0}, 31, v{vBI+4*t+2*k}\nv_ashrrev_i32 v{t1}, 31, v{vBI+4*t+2*k+1}\nv_perm_b32 v{t0}, v{t1}, v{t0}, s{sT1}\nv_not_b32 v{vAM+2*t+k}, v{t0}")
    S2 = S
    def Sitems(L):
        it = []
        for x in L:
            if isinstance(x, tuple) and x[0] == "ds": it += g.Ids(x[1])
            elif isinstance(x, tuple): it.append((lambda x=x: g(x[1]), len(x[1].split("\n"))))
            else: it += g.I(x)
        return it
    def atomize(L):
        out = []
        for x in L:
            if out and isinstance(x, str) and x.startswith("s_cselect") and isinstance(out[-1], str): out[-1] = ("blk", out[-1] + "\n" + x)
            else: out.append(x)
        return out
    NP2 = opt.get("npre2", 4)
    dm = cat(p1a_dma(i) for i in range(NPRE, NP2))
    s2n = min(len(S2), opt.get("s2early", 1000))
    SM = [f for f, c in Sitems(atomize(S1) + S2[:s2n])]
    w0 = int(len(SM) * opt.get("w0", 0.6))
    g.weave(SM[:w0], []); g.weave(SM[w0:], [(dm, opt.get("r1", 0.16))])
    S2 = S2[s2n:]
    g.ts("setup done")

    def tr16(dst, ldsoff, tag):
        o = ldsoff - R
        reg, o = (vTR16a, o) if o < 36864 else (vTR16b, o - 36864)
        return cat(g.Ids(f"ds_read_b64_tr_b16 {ar(dst+2*e,2)}, v{reg} offset:{o+512*e}", tag) for e in range(2))
    def stats_calc(gr, sm, tmp, a2=True):
        q0, mean, var, rstd = tmp, tmp + 1, tmp + 2, tmp + 3
        L = (f"v_cndmask_b32 v{q0}, v{gr}, v{gr+1}, s[{sM1}:{sM1+1}]\nv_cndmask_b32 v{q0}, v{q0}, v{gr+2}, s[{sM2}:{sM2+1}]\nv_cndmask_b32 v{q0}, v{q0}, v{gr+3}, s[{sM3}:{sM3+1}]\n"
          f"v_mul_f32 v{mean}, {fl(1/512)}, v{sm}\nv_mul_f32 v{q0}, {fl(1/512)}, v{q0}\nv_fma_f32 v{var}, -v{mean}, v{mean}, v{q0}\nv_max_f32 v{var}, 0, v{var}\n"
          f"v_add_f32 v{rstd}, {fl(EPS)}, v{var}\nv_rsq_f32 v{rstd}, v{rstd}").split("\n")
        if a2: L += f"v_mul_f32 v{var}, v{var}, v{rstd}\nv_mul_f32 v{var}, v{var}, v{rstd}\nv_add_f32 v{var}, {fl(EPS)}, v{var}\nv_rsq_f32 v{var}, v{var}\nv_mul_f32 v{var}, v{var}, v{rstd}".split("\n")
        return L
    def bcast_g0(dst, src, tmp):
        return [f"v_mov_b32 v{dst}, v{src}", f"v_mov_b32 v{tmp}, v{src}", f"v_permlane16_swap_b32 v{dst}, v{tmp}", f"v_mov_b32 v{tmp}, v{dst}", f"v_permlane32_swap_b32 v{dst}, v{tmp}"]

    hA = V(16); csA = V(4); grA = V(4); smA = V(4); grH = V(4)
    QSLOT = lambda j: R + 12288 * (j % 6)
    def qkv_dma(j):
        return cat(g.Idma(sWQKV, vW3072, (sQK + (j >> 1), (j & 1) * 32 * 3072 + s_ * 1024), QSLOT(j) + s_ * 4096, f"q{j}") for s_ in range(3))
    W2L = lambda u: R + (49152 + 4096 * u) % 73728
    def p1a_reads(i):
        it = []
        for ks in (2 * i, 2 * i + 1): it += tr16((ks & 3) * 24, W1L(i) + (ks & 1) * 4096, f"r{2*i}")
        for ks in (2 * i, 2 * i + 1):
            fb = (ks & 3) * 24
            it += g.Ids(f"ds_read_b128 {ar(fb+4,4)}, v{vXp+(ks&1)} offset:{i*2048}", f"r{ks}")
            it += g.Ids(f"ds_read_b128 {ar(fb+20,4)}, v{vXh0+(ks&1)} offset:{i*2048}", f"r{ks}")
            for b in range(1, 4): it += g.Ids(f"ds_read_b128 {ar(fb+4+4*b,4)}, v{vXp+2*b+(ks&1)} offset:{i*2048}", f"r{ks}")
        return it
    def p1a_mfma(ks):
        fb = (ks & 3) * 24; z = "0" if ks == 0 else None
        L = [lambda: (g.wait(lg=f"r{ks}"), MF16(g, vr(grA, 4), ar(fb + 4, 4), ar(fb + 4, 4), z))]
        L.append(lambda: MF16(g, vr(smA, 4), vr(vONE, 4), ar(fb + 4, 4), z))
        L.append(lambda: MF16(g, vr(grH, 4), ar(fb + 20, 4), ar(fb + 20, 4), z))
        L.append(lambda: MF16(g, vr(csA, 4), ar(fb, 4), vr(vONE, 4), z))
        for b in range(4): L.append(lambda b=b: MF16(g, vr(hA + 4 * b, 4), ar(fb, 4), ar(fb + 4 + 4 * b, 4), z))
        return L
    free_after = {1: [0], 2: [1], 4: [2], 5: [3], 7: [4]}
    nxtc = NP2; dq = []; qpend = []
    CPER = opt.get("cper", 2)
    for i in range(8):
        g.wait(vm=f"c{i}", lg="all" if i == 0 else f"r{2*i-2}")
        g("s_barrier")
        if i in (0, 3): g.ts(f"c{i} landed")
        if i == NPRE:
            g(f"s_or_b32 s{sT1}, s2, s{sW}\ns_cbranch_scc0 Lr")
            g.label("Lnr")
            g.tail.append(f"Lr:\ns_mov_b64 exec, 1\nbuffer_store_dword v{vPA+1}, v{vPA}, s[{sDBG}:{sDBG+3}], 0 offen sc1\ns_mov_b64 exec, -1\ns_branch Lnr")
        if i == 7: g.ts("c7 landed")
        qpend += free_after.get(i, [])
        dq = []
        k = CPER
        while k and nxtc < 8: dq += p1a_dma(nxtc); nxtc += 1; k -= 1
        if nxtc == 8 and opt.get("touch1", 0) == 2 and "t1" not in g.seen: dq += touch(sWQKV, 12, True); g.seen.add("t1")
        while k and qpend: dq += qkv_dma(qpend.pop(0)); k -= 1
        rd = p1a_reads(i)
        if i == 0: g.run(rd + dq)
        else: g.weave(p1a_mfma(2 * i - 2) + p1a_mfma(2 * i - 1), [(rd, 1.0), (dq, len(dq) / 15.0 + 0.01)])
    dq = cat(qkv_dma(j) for j in qpend)
    dq = g.weave(p1a_mfma(14) + p1a_mfma(15), [(dq, 1.0)], flush=False)[0]
    g.ts("p1a mfma done")
    ta = V(4); tb = V(4); smH = V(2)
    for x in stats_calc(grA, smA, ta): g(x)
    g(f"s_mov_b64 exec, s[{sMD}:{sMD+1}]")
    g.ds(f"ds_write_b32 v{vTP}, v{ta+1} offset:{T_MEAN}"); g.ds(f"ds_write_b32 v{vTP}, v{ta+2} offset:{T_A2}"); g.ds(f"ds_write_b32 v{vTP}, v{ta+3} offset:{T_RSTD}")
    g("s_mov_b64 exec, -1")
    g.run(dq)
    for x in bcast_g0(smH, grH, smH + 1): g(x)
    g.wait(lg="all"); g("s_barrier")
    vST = V(8); gt = V(16)
    for i in range(4): g.ds(f"ds_read2_b32 {vr(vST+2*i,2)}, v{vTP+i} offset0:{T_MEAN//4} offset1:{T_A2//4}", f"s{i}")
    g.ds(f"ds_read_b128 {vr(vXT,4)}, v{vXTa}"); g.ds(f"ds_read_b128 {vr(vXT+4,4)}, v{vXTa+1}")
    g.ds(f"ds_read2_b32 {vr(vXS,2)}, v{vXSa} offset0:{T_MEAN//4} offset1:{T_RSTD//4}")
    for x in stats_calc(grH, smH, tb, a2=False): g(x)
    g(f"s_mov_b64 exec, s[{sMD}:{sMD+1}]")
    g.ds(f"ds_write_b32 v{vTC}, v{tb+1} offset:{T_MEAN+256}"); g.ds(f"ds_write_b32 v{vTC}, v{tb+3} offset:{T_RSTD+256}")
    g("s_mov_b64 exec, -1")
    Q5LATE = opt.get("q5late", 1)
    dm = ([] if Q5LATE else qkv_dma(5)) + poll_issue(g, vPA, "rdy", sDBG)
    g.wait(lg="s3")
    L = []
    for i in range(4): L += norm_pk(hA + 4 * i, csA, vST + 2 * i, 4)
    L += gelu_pk([hA + 2 * k for k in range(8)], gt)
    pk = gt
    for k in range(8): L.append(f"v_cvt_pk_bf16_f32 v{pk+k}, v{hA+2*k}, v{hA+2*k+1}")
    for P in range(2): L += [f"v_permlane16_swap_b32 v{pk+4*P}, v{pk+4*P+2}", f"v_permlane16_swap_b32 v{pk+4*P+1}, v{pk+4*P+3}"]
    for P in range(2):
        for k in range(4): L.append(f"v_cndmask_b32 v{pk+4*P+k}, 0, v{pk+4*P+k}, s[{sMZ+2*P}:{sMZ+2*P+1}]")
    def touch2():
        if opt.get("touch2", 1):
            g(f"s_lshl_b32 s{sT3}, s2, 2\ns_add_u32 s{sT3}, s{sT3}, s{sW}\ns_mul_i32 s{sT2}, s{sT3}, {14*128}\ns_lshl_b32 s{sT3}, s{sT3}, 9\ns_bfm_b64 exec, 14, 0")
            for srd in (sW3, sW4): g.vmem(f"buffer_load_dword v{vDUM}, v{vL128}, s[{srd}:{srd+3}], s{sT2} offen", "touch")
            g("s_mov_b64 exec, 15")
            for srd in (sW2, sWO): g.vmem(f"buffer_load_dword v{vDUM}, v{vL128}, s[{srd}:{srd+3}], s{sT3} offen", "touch")
            g("s_mov_b64 exec, -1")
    g.weave(valu_main(g, L[:40]), [(dm, 0.3)])
    if opt.get("t2pos", 2) == 0: touch2()
    g.weave(valu_main(g, L[40:]), [])
    for P in range(2): g.vmem(f"buffer_store_dwordx4 {vr(pk+4*P,4)}, v{vGAh+P}, s[{sWS}:{sWS+3}], 0 offen sc1", "stG")
    if Q5LATE: g.run(qkv_dma(5))
    if opt.get("t2pos", 2) == 1: touch2()
    g(f"s_bfe_u32 s{sTAU}, s2, 0x30003\ns_lshr_b32 s{sT1}, s2, 6\ns_lshl_b32 s{sT1}, s{sT1}, 3\ns_and_b32 s{sT2}, s2, 7\ns_add_u32 s{sT1}, s{sT1}, s{sT2}")
    g(f"s_and_b32 s{sT2}, s{sTAU}, 3\ns_lshl_b32 s{sT2}, s{sT2}, 5\ns_add_u32 s{sT1}, s{sT1}, s{sT2}\ns_lshl_b32 s{sT1}, s{sT1}, 2\ns_add_u32 s{sT1}, s{sT1}, s{sW}\ns_mul_i32 s{sTO2}, s{sT1}, {28*128}\ns_lshl_b32 s{sTO1}, s{sT1}, 10")
    def touch2s(k):
        lab = g.newlabel("Lt2"); back = g.newlabel("Lt2b")
        a_, b_ = (sW2, sW3) if k < 4 else (sWO, sW4)
        g.tail.append(f"{lab}:\ns_bfm_b64 exec, 8, 0\nbuffer_load_dword v{vDUM}, v{vL128}, s[{a_}:{a_+3}], s{sTO1} offen\ns_bfm_b64 exec, 28, 0\nbuffer_load_dword v{vDUM}, v{vL128}, s[{b_}:{b_+3}], s{sTO2} offen\ns_mov_b64 exec, -1\ns_branch {back}")
        return [(lambda: g(f"s_cmp_eq_u32 s{sTAU}, {k}\ns_cbranch_scc1 {lab}\n{back}:"), 2)]
    g.ts("h stored")
    V.reset(KEEP)
    g.forget()
    qA = V(16); kA = V(20); vA = V(20); cq = V(4)
    QEND = V.mark()
    WF = lambda j: 64 + (j & 1) * 12
    XF = lambda j: 88 + (j % 3) * 20
    def qkv_rw(j): return cat(tr16(WF(j) + 4 * s_, QSLOT(j) + s_ * 4096, f"r{j}") for s_ in range(3))
    def qkv_rx(j):
        itx = []
        for b in range(4): itx += g.Ids(f"ds_read_b128 {ar(XF(j)+4*b,4)}, v{vXr0+(j&1)} offset:{b*16384+(j>>1)*2048}", f"x{j}")
        return itx + g.Ids(f"ds_read_b128 {ar(XF(j)+16,4)}, v{vXh0+(j&1)} offset:{(j>>1)*2048}", f"x{j}")
    def qkv_mfma(j):
        fb = WF(j); z = "0" if j == 0 else None
        X = lambda b: ar(XF(j) + 4 * b, 4)
        L = []
        for b in range(4): L.append(lambda b=b: MF16(g, vr(qA + 4 * b, 4), ar(fb, 4), X(b), z))
        for b in range(5): L.append(lambda b=b: MF16(g, vr(kA + 4 * b, 4), ar(fb + 4, 4), X(b), z))
        for b in range(5): L.append(lambda b=b: MF16(g, vr(vA + 4 * b, 4), X(b), ar(fb + 8, 4), z))
        L.append(lambda: MF16(g, vr(cq, 4), ar(fb, 4), vr(vONE, 4), z))
        return L
    def act_load(dst, voff, stab, odd, tag):
        it = [] if odd else g.I(f"s_lshr_b32 s{sA0}, s{stab}, 4")
        return it + g.Ivm(f"buffer_load_dwordx4 {ar(dst,4)}, v{voff}, s[{sWS}:{sWS+3}], s{sA0} offen offset:{odd*2048} sc1", tag)
    w512 = lambda srd, u, lds, tag: g.Idma(srd, vW1024, (sW1Ks + (u >> 1), (u & 1) * 32768), lds, tag)
    JPUB = opt.get("jpub", 3); JPOLL = opt.get("jpoll", 9); JCHK = opt.get("jchk", 12)
    gl = 0
    s2 = Sitems([f"s_mul_i32 s{sXK+i}, s{sXK+i}, 1792" for i in range(8)] + S2)
    assert not S2
    g.run(qkv_rx(0) + s2); s2 = []
    for j in range(17):
        g.wait(vm=([f"q{j}"] if j < 16 else []) + (["stG"] if j == JPUB else []), lg=f"r{j-1}" if j else None)
        if j == JPUB: poll_check(g, 1, "rdy", srd=sDBG)
        if j == JCHK: poll_check(g, 8, "pollH")
        g("s_barrier")
        if j == JPUB: signal(g, vPLH); g.ts("h published")
        if j == JCHK: g.ts("h visible")
        rd = (qkv_rw(j) if j < 16 else []) + (qkv_rx(j + 1) if j < 15 else [])
        dm = []
        if j == JPOLL: dm += poll_issue(g, vPLH, "pollH")
        if j >= 1:
            nxt = j + 5
            if nxt < 16: dm += qkv_dma(nxt)
            else:
                for u in range(3 * (nxt - 16), min(16, 3 * (nxt - 16) + 3)): dm += w512(sW2, u, W2L(u), "w2")
        if opt.get("t2pos", 2) == 2:
            for k in range(8):
                if opt.get("t2j", 0) + int(k * opt.get("t2s", 1)) == j: dm += touch2s(k)
        if j >= JCHK:
            k = opt.get("gper", 2) if j < 16 else 4
            for t in range(gl, min(16, gl + k)): dm += act_load(4 * t, vAG, sW1Ks + (t >> 1), t & 1, f"g{t}")
            gl = min(16, gl + k)
        if j == 0: g.run(rd + dm)
        else: g.weave(qkv_mfma(j - 1), [(rd, 0.8), (dm, sum(c for f, c in dm) / 13.0 + 0.01)])
    g.ts("qkv mfma done")
    print("S2 left after QKV:", len(s2))
    g.forget()
    aWF = 128
    def t2_reads(ldsoff, slot, tag):
        k = ldsoff // 61440; o = ldsoff - 61440 * k
        return cat(g.Ids(f"ds_read_b64_tr_b16 {ar(aWF+8*slot+4*f+2*e,2)}, v{vT2+2*k+f} offset:{o+512*e}", tag) for f in range(2) for e in range(2))
    def t2_mfma(slot, act, wtag, atag, z0=None, z1=None):
        return [lambda: (g.wait(vm=atag, lg=wtag), MF32(g, vr(vAC1, 16), ar(aWF + 8 * slot + 4, 4), act, z1)),
                lambda: MF32(g, vr(vRES, 16), ar(aWF + 8 * slot, 4), act, z0)]
    for t in range(gl, 16): g.run(act_load(4 * t, vAG, sW1Ks + (t >> 1), t & 1, f"g{t}"))
    g.wait(vm="w2"); g("s_barrier")
    w3 = lambda u, hf, lds: g.Idma(sW3, vW3584, (sXK + (u >> 1), (u & 1) * 32 * 3584 + 128 * hf), lds, f"w3{hf}")
    code_touch = g.I(f"v_lshlrev_b32 v{vPV}, 7, v0") + g.Ivm(f"buffer_load_dword v{vDUM}, v{vPV}, s[{sCODE}:{sCODE+3}], s{sCT} offen", "touch")
    w3a = cat(w3(u, 0, u * 4096) for u in range(16))
    if opt.get("ct2", 1): w3a = code_touch + w3a
    w3b = cat(w3(u, 1, R + u * 4096) for u in range(16))
    vRB = V(16); pk = V(8); s1 = V(2); s2_ = V(2); xf = V(16)
    tab = [("blk", f"s_lshl_b32 s{sT1}, s{sROT}, 1\ns_cmp_ge_u32 s{sT1}, 14\ns_cselect_b32 s{sT1}, 1, s{sT1}\ns_lshl_b32 s{sW4T[0]}, s{sT1}, 17")]
    for u in range(1, 14): tab.append(("blk", f"s_add_u32 s{sT1}, s{sW4T[u-1]}, {1<<17}\ns_cmp_eq_u32 s{sT1}, {14<<17}\ns_cselect_b32 s{sW4T[u]}, 0, s{sT1}"))
    pre = []
    for k in range(8): pre += [f"v_lshlrev_b32 v{xf+2*k}, 16, v{vXT+k}", f"v_and_b32 v{xf+2*k+1}, 0xffff0000, v{vXT+k}"]
    g.run(t2_reads(W2L(0), 0, "w0") + t2_reads(W2L(1), 1, "w1"))
    main = []; rd = []
    for t in range(16):
        main += t2_mfma(t % 4, ar(4 * t, 4), f"w{t}", f"g{t}", *(("0", "0") if t == 0 else ()))
        if t + 2 < 16: rd += t2_reads(W2L(t + 2), (t + 2) % 4, f"w{t+2}")
    rest = g.weave(main, [(rd, 2.0), (w3a, 1.4), (s2 + Sitems(pre), 2.0)], flush=False)
    g.ts("p2 mfma done")
    def reduce_send():
        for q in range(4): g.ds(f"ds_write_b128 v{vRD}, {vr(vAC1+4*q,4)} offset:{q*1024}")
    def reduce_recv():
        g.wait(lg="all"); g("s_barrier")
        for q in range(4): g.ds(f"ds_read_b128 {vr(vRB+4*q,4)}, v{vRD+1} offset:{q*1024}", f"rb{q}")
    g.run(rest[1] + rest[2])
    reduce_send()
    for k in range(0, 16, 2):
        g(f"v_pk_add_f32 {vr(vRB+k,2)}, {vr(xf+k,2)}, {vr(vXS,2)} op_sel:[0,0] op_sel_hi:[1,0] neg_lo:[0,1] neg_hi:[0,1]")
    for k in range(0, 16, 2):
        g(f"v_pk_fma_f32 {vr(vRES+k,2)}, {vr(vRB+k,2)}, {vr(vXS,2)}, {vr(vRES+k,2)} op_sel:[0,1,0] op_sel_hi:[1,1,1]")
    reduce_recv()
    for k in range(0, 16, 2):
        if k % 4 == 0: g.wait(lg=f"rb{k//4}")
        g(f"v_pk_add_f32 {vr(vAC1+k,2)}, {vr(vRES+k,2)}, {vr(vRB+k,2)}")
        g(f"v_cvt_pk_bf16_f32 v{pk+k//2}, v{vAC1+k}, v{vAC1+k+1}")
        if k % 8 == 6: g.vmem(f"buffer_store_dwordx4 {vr(pk+4*(k//8),4)}, v{vSX}, s[{sWS}:{sWS+3}], 0 offen offset:{512*(k//8)} sc1", "stX")
    g(f"v_pk_add_f32 {vr(s1,2)}, {vr(vAC1,2)}, {vr(vAC1+2,2)}\nv_pk_mul_f32 {vr(s2_,2)}, {vr(vAC1,2)}, {vr(vAC1,2)}")
    for k in range(2, 16, 2):
        if k > 2: g(f"v_pk_add_f32 {vr(s1,2)}, {vr(s1,2)}, {vr(vAC1+k,2)}")
        g(f"v_pk_fma_f32 {vr(s2_,2)}, {vr(vAC1+k,2)}, {vr(vAC1+k,2)}, {vr(s2_,2)}")
    g(f"v_add_f32 v{s1}, v{s1}, v{s1+1}\nv_add_f32 v{s2_}, v{s2_}, v{s2_+1}")
    g(f"v_pk_add_f32 {vr(vRES,2)}, {vr(vAC1,2)}, {vr(xf,2)}\nv_pk_add_f32 {vr(vRES+2,2)}, {vr(vAC1+2,2)}, {vr(xf+2,2)}")
    g(f"v_permlane32_swap_b32 v{s1}, v{s2_}\nv_add_f32 v{s1}, v{s1}, v{s2_}")
    g.vmem(f"buffer_store_dword v{s1}, v{vSS}, s[{sWS}:{sWS+3}], 0 offen sc1", "stX")
    g.ts("x1 stored")
    for k in range(4, 16, 2): g(f"v_pk_add_f32 {vr(vRES+k,2)}, {vr(vAC1+k,2)}, {vr(xf+k,2)}")
    V.reset(QEND)
    vSRm = V(20); vSRr = V(20); vSC = V(10)
    ck = (PERSIST + 1) // 2 * 2; cv = ck + 4; assert cv + 2 <= KEEP
    for b in range(5): g.ds(f"ds_read2_b32 {vr(vSC+2*b,2)}, v{vTC} offset0:{T_MEAN//4+16*b} offset1:{T_RSTD//4+16*b}", "sc")
    for b in range(5):
        g.ds(f"ds_read_b128 {vr(vSRm+4*b,4)}, v{vTRW} offset:{T_MEAN+64*b}", "sr"); g.ds(f"ds_read_b128 {vr(vSRr+4*b,4)}, v{vTRW} offset:{T_RSTD+64*b}", "sr")
    A = []
    def a(s_):
        for l in s_.split("\n"): A.append(lambda l=l: g(l))
    for r in range(4): a(f"v_mov_b32_dpp v{ck+r}, v{kA+16+r} row_newbcast:0 row_mask:0xf bank_mask:0xf")
    a("\n".join(bcast_g0(cv, vA + 16, cv + 1)))
    A.append(lambda: g.wait(lg="sc"))
    for b in range(5): a("\n".join(norm_pk(kA + 4 * b, ck, vSC + 2 * b, 4)))
    for b in range(4): a(f"v_mul_f32 v{vSC+2*b+1}, {fl(QSCALE)}, v{vSC+2*b+1}")
    for b in range(4): a("\n".join(norm_pk(qA + 4 * b, cq, vSC + 2 * b, 4)))
    qP = vAC1; kP = vSC
    for b in range(4):
        for k in range(2): a(f"v_cvt_pk_bf16_f32 v{qP+2*b+k}, v{qA+4*b+2*k}, v{qA+4*b+2*k+1}")
    for b in range(5):
        for k in range(2): a(f"v_cvt_pk_bf16_f32 v{kP+2*b+k}, v{kA+4*b+2*k}, v{kA+4*b+2*k+1}")
    A.append(lambda: g.wait(lg="sr"))
    for b in range(5):
        for k in (0, 2): a(f"v_pk_fma_f32 {vr(vA+4*b+k,2)}, {vr(vSRm+4*b+k,2)}, {vr(cv,2)}, {vr(vA+4*b+k,2)} op_sel_hi:[1,0,1] neg_lo:[1,0,0] neg_hi:[1,0,0]")
    for b in range(5):
        for k in (0, 2): a(f"v_pk_mul_f32 {vr(vA+4*b+k,2)}, {vr(vA+4*b+k,2)}, {vr(vSRr+4*b+k,2)}")
    iPUB = len(A)
    Sc = qA; Sp = kA; vP = vSRm
    vc = [f"v_cvt_pk_bf16_f32 v{vP+6*p+2*n+k}, v{vA+4*b+2*k}, v{vA+4*b+2*k+1}" for p in range(2) for n, b in enumerate((4, p, 2 + p)) for k in range(2)]
    for b in range(4):
        tg, p = b >> 1, b & 1
        pb = 4 if tg == 0 else p
        pbias = (vBI + 8 + 4 * p) if tg == 0 else vBI + 4
        a(f"v_mfma_f32_16x16x16_bf16 {vr(Sc+4*b,4)}, {vr(kP+2*b,2)}, {vr(qP+2*b,2)}, {vr(vBI,4)}\n{vc[3*b]}\n{vc[3*b+1]}")
        a(f"v_mfma_f32_16x16x16_bf16 {vr(Sp+4*b,4)}, {vr(kP+2*pb,2)}, {vr(qP+2*b,2)}, {vr(pbias,4)}\n{vc[3*b+2]}")
    PP = vSRr; Oa = vA; Dn = Sc; mx = Sp
    for b in range(4):
        for r in range(4): a(f"v_max_f32 v{Sc+4*b+r}, v{Sc+4*b+r}, v{Sp+4*b+r}")
    for b in range(4): a(f"v_max3_f32 v{mx+4*b+2}, v{Sc+4*b}, v{Sc+4*b+1}, v{Sc+4*b+2}")
    for b in range(4): a(f"v_max_f32 v{mx+4*b}, v{mx+4*b+2}, v{Sc+4*b+3}\nv_max_f32 v{mx+4*b+1}, v{mx+4*b+2}, v{Sc+4*b+3}")
    for b in range(4): a(f"v_permlane16_swap_b32 v{mx+4*b}, v{mx+4*b+1}")
    for b in range(4): a(f"v_max_f32 v{mx+4*b+2}, v{mx+4*b}, v{mx+4*b+1}\nv_max_f32 v{mx+4*b+3}, v{mx+4*b}, v{mx+4*b+1}")
    for b in range(4): a(f"v_permlane32_swap_b32 v{mx+4*b+2}, v{mx+4*b+3}")
    for b in range(4): a(f"v_max_f32 v{mx+4*b}, v{mx+4*b+2}, v{mx+4*b+3}")
    for b in range(4):
        for k in (0, 2): a(f"v_pk_add_f32 {vr(Sc+4*b+k,2)}, {vr(Sc+4*b+k,2)}, {vr(mx+4*b,2)} op_sel:[0,0] op_sel_hi:[1,0] neg_lo:[0,1] neg_hi:[0,1]")
    for b in range(4):
        for r in range(4): a(f"v_exp_f32 v{Sc+4*b+r}, v{Sc+4*b+r}")
    for b in range(4):
        for k in range(2): a(f"v_cvt_pk_bf16_f32 v{PP+4*b+2+k}, v{Sc+4*b+2*k}, v{Sc+4*b+2*k+1}")
    for b in range(4):
        tg, p = b >> 1, b & 1
        pm = (vAM + 4 + 2 * p) if tg == 0 else vAM + 2
        for k in range(2): a(f"v_and_b32 v{PP+4*b+k}, v{pm+k}, v{PP+4*b+2+k}")
        for k in range(2): a(f"v_and_b32 v{PP+4*b+2+k}, v{vAM+k}, v{PP+4*b+2+k}")
    for b in range(4): a(f"v_mfma_f32_16x16x32_bf16 {vr(Dn+4*b,4)}, {vr(vONE,4)}, {vr(PP+4*b,4)}, 0")
    for b in range(4):
        tg, p = b >> 1, b & 1
        a(f"v_mfma_f32_16x16x32_bf16 {vr(Oa+4*b,4)}, {vr(vP+6*p+2*tg,4)}, {vr(PP+4*b,4)}, 0")
    for b in range(4): a(f"v_rcp_f32 v{Dn+4*b}, v{Dn+4*b}")
    for b in range(4):
        for k in (0, 2): a(f"v_pk_mul_f32 {vr(Oa+4*b+k,2)}, {vr(Oa+4*b+k,2)}, {vr(Dn+4*b,2)} op_sel:[0,0] op_sel_hi:[1,0]")
    pk = vAC1 + 8
    for k in range(8): a(f"v_cvt_pk_bf16_f32 v{pk+k}, v{Oa+2*k}, v{Oa+2*k+1}")
    for P in range(2): a(f"v_permlane16_swap_b32 v{pk+4*P}, v{pk+4*P+2}\nv_permlane16_swap_b32 v{pk+4*P+1}, v{pk+4*P+3}")
    iPUB += opt.get("ipub", 0)
    rest = g.weave(A[:iPUB], [(w3b, 0.22)], flush=False)
    g.wait(vm="stX"); g("s_barrier"); signal(g, vPLX)
    g.ts("x1 published")
    iPX = len(A) - opt.get("ipx", 0)
    r_ = g.weave(A[iPUB:iPX], [(rest[0], 0.3), (Sitems(tab), 0.35)], flush=False)
    g.run(r_[0] + poll_issue(g, vPLX, "pollX"))
    g.weave(A[iPX:], [(r_[1], 0.35)])
    for P in range(2): g.vmem(f"buffer_store_dwordx4 {vr(pk+4*P,4)}, v{vGAo+P}, s[{sWS}:{sWS+3}], 0 offen sc1", "stO")
    g.ts("o stored")
    V.reset(vBI)
    base_slots = [65536 + 4096 * i for i in range(4)] + [R + 65536 + 4096 * i for i in range(2)] + [R + 4096 * i for i in range(16)] + [4096 * i for i in range(16)]
    W4L = lambda n: base_slots[n % 38]
    def w4_dma(n): return g.Idma(sW4, vW1024, (sW4T[(n % 28) >> 1], ((n // 28) * 2 + (n & 1)) * 32768), W4L(n), f"f{n}")
    wol = cat(w512(sWO, u, 4096 * u, "wo") for u in range(16))
    ol = cat(act_load(4 * t, vAO, sW1Ks + (t >> 1), t & 1, f"a{t}") for t in range(16))
    hslots = [224 + 4 * i for i in range(8)] + [64 + 4 * i for i in range(16)] + [160 + 4 * i for i in range(16)] + [4 * i for i in range(16)]
    hreg = lambda n: hslots[n]
    hl = lambda n: act_load(hreg(n), vAH + n // 28, sW4T[(n % 28) >> 1], n & 1, f"ha{n}")
    CS3FIRST = opt.get("cs3first", 1)
    g.wait(vm="w31")
    if not CS3FIRST: poll_check(g, 16, "pollX")
    g("s_barrier")
    g.ts("w3 landed")
    g.forget()
    g(f"s_cmp_ge_u32 s{sU14}, 14\ns_cbranch_scc1 Lp3idle")
    vm_at_split = list(g.vm)
    aP = V(64); c4 = V(4); st = V(16); cs = V(16); gt = V(16); pk = V(8)
    aFR = 192
    def w3_read(n, areg, t, tag):
        return cat(g.Ids(f"ds_read_b64_tr_b16 {ar(aFR+4*(n%8)+2*e,2)}, v{areg} offset:{t*2048+512*e}", tag) for e in range(2))
    xl = []
    for t in range(32):
        if t % 4 == 0: xl += g.I(f"s_lshr_b32 s{sA0}, s{sW1Ks + t//4}, 4")
        xl += g.Ivm(f"buffer_load_dwordx4 {ar(64+4*t,4)}, v{vAX}, s[{sWS}:{sWS+3}], s{sA0} offen offset:{(t%4)*1024} sc1", f"x{t}")
    for f in range(16): xl += g.Ivm(f"buffer_load_dword v{st+f}, v{vSTL}, s[{sWS}:{sWS+3}], 0 offen offset:{f*256} sc1", "st")
    D = 5
    def cs3(fill):
        g.run(cat(w3_read(t, v3 + 4, t, f"s{t}") for t in range(D)))
        main = [(lambda u=u: (g.wait(lg=f"s{u}"), MF16(g, vr(c4, 4), ar(aFR + 4 * (u % 8), 4), vr(vSEL, 4), "0" if u == 0 else None))) for u in range(32)]
        rd = cat(w3_read(t, v3 + 4, t, f"s{t}") for t in range(D, 32))
        return g.weave(main, [(rd, 2.0), fill], flush=False)[1]
    NX = opt.get("nx", 15)
    if CS3FIRST: g.run(cs3((cat(w4_dma(u) for u in range(6)), 0.6)))
    else:
        g.run(xl[:NX])
        xl = cs3((xl[NX:], opt.get("rx", 0.0)))
    g(f"s_mov_b32 exec_lo, 0x00030003\ns_mov_b32 exec_hi, 0x00030003")
    g.ds(f"ds_write_b128 v{vCW}, {vr(c4,4)}")
    g("s_mov_b64 exec, -1")
    g.wait(vm="stO", lg="all")
    if CS3FIRST: poll_check(g, 16, "pollX")
    g("s_barrier")
    if CS3FIRST: g.run(xl[:NX]); xl = xl[NX:]
    signal(g, vPLO)
    g.ts("cs3 done"); g.forget()
    seq = [(t, b) for t in range(32) for b in (0, 1)] + [(t, b) for t in range(32) for b in (2, 3)]
    def p3_main(u):
        t, b = seq[u]
        return lambda: (g.wait(vm=f"x{t}" if b == 0 else None, lg=f"s{u|1}" if u % 2 == 0 else None), MF32(g, vr(aP + 16 * b, 16), ar(aFR + 4 * (u % 8), 4), ar(64 + 4 * t, 4), "0" if t == 0 else None))
    def p3_rd(lo, hi): return cat(w3_read(n, v3 + seq[n][1], seq[n][0], f"s{n}") for n in range(lo, hi))
    D = 6
    g.run(p3_rd(0, D))
    if not CS3FIRST: xl += cat(w4_dma(u) for u in range(6))
    g.weave([p3_main(u) for u in range(64)], [(p3_rd(D, 64), 2.0), (xl, opt.get("rxl", 0.65))])
    g.ts("p3 half")
    g("s_barrier")
    def csr(b): return [(lambda q=q: g.ds(f"ds_read_b128 {vr(cs+4*q,4)}, v{vCR} offset:{128*b+16*q}", "cs")) for q in range(4)]
    def epi(b0):
        E = []
        for b in (b0, b0 + 1):
            E.append(lambda: g.wait(lg="cs"))
            N = valu_main(g, norm_pk(aP + 16 * b, cs, st, 16))
            E += N[:8]
            if b < 3: E += csr(b + 1)
            E += N[8:]
            E += valu_main(g, gelu_pk([aP + 16 * b + 2 * k for k in range(8)], gt))
            for u in range(2):
                E += valu_main(g, [f"v_cvt_pk_bf16_f32 v{pk+k}, v{aP+16*b+2*k}, v{aP+16*b+2*k+1}" for k in range(4 * u, 4 * u + 4)])
                E.append(lambda b=b, u=u: g.vmem(f"buffer_store_dwordx4 {vr(pk+4*u,4)}, v{vSH+b//2}, s[{sWS}:{sWS+3}], 0 offen offset:{(b%2)*2048+512*u} sc1", f"stH{b//2}"))
        return E
    for f in csr(0): f()
    g.wait(vm="st")
    for k in range(2, 16, 2): g(f"v_pk_add_f32 {vr(st,2)}, {vr(st,2)}, {vr(st+k,2)}")
    g(f"v_add_f32 v{st}, v{st}, v{st+1}\nv_mul_f32 v{st}, {fl(1/512)}, v{st}\nv_mov_b32 v{st+1}, v{st}\nv_permlane32_swap_b32 v{st}, v{st+1}")
    g(f"v_fma_f32 v{st+1}, -v{st}, v{st}, v{st+1}\nv_max_f32 v{st+1}, 0, v{st+1}\nv_add_f32 v{st+1}, {fl(EPS)}, v{st+1}\nv_rsq_f32 v{st+1}, v{st+1}")
    E = epi(0)
    rest = g.weave(E, [(poll_issue(g, vPLO, "pollO") + wol, opt.get("rwo", 0.2))], flush=False)[0]
    g.ts("h3a stored")
    g.run(p3_rd(64, 64 + D))
    poll_check(g, 8, "pollO"); g("s_barrier")
    NA = opt.get("na", 20)
    f1 = rest + ol
    rd = p3_rd(64 + D, 128)
    r = g.weave([p3_main(u) for u in range(64, 64 + NA)], [(rd, 2.0), (f1, 0.75)], flush=False)
    g.wait(vm="stH0"); g("s_barrier"); signal(g, vPLA)
    g.ts("h3a published")
    NB = opt.get("nb", 52)
    r = g.weave([p3_main(u) for u in range(64 + NA, 64 + NB)], [(r[0], 2.0), (r[1], 0.75)], flush=False)
    g.weave([p3_main(u) for u in range(64 + NB, 128)], [(r[0], 2.0), (r[1], 0.75)])
    g.ts("p3 mfma done")
    g("s_barrier")
    NH0 = opt.get("nh0", 8)
    f2 = cat(w4_dma(6 + i) for i in range(16))
    E = epi(2)
    iPA = int(len(E) * opt.get("ipa", 0.5))
    rest2 = g.weave(E[:iPA], [(f2, opt.get("rf2", 0.2))], flush=False)[0]
    g.run(poll_issue(g, vPLA, "pollA"))
    rest2 = g.weave(E[iPA:], [(rest2, opt.get("rf2", 0.2))], flush=False)[0]
    g.ts("h3b stored")
    g.run(rest2)
    vm_active = list(g.vm)
    g.label("Lp3join")
    keep = g.lines; g.lines = []
    g.label("Lp3idle")
    g.vm = vm_at_split
    g.wait(vm="stO"); g("s_barrier"); signal(g, vPLO)
    g.run(cat(w4_dma(u) for u in range(22)) + wol)
    g.run(poll_issue(g, vPLO, "pollO")); poll_check(g, 8, "pollO", sleep=16); g("s_barrier")
    g.run(ol)
    g.run(poll_issue(g, vPLA, "pollA")); poll_check(g, 14, "pollA", sleep=opt.get("isleep", 32))
    g.wait(vm="all")
    g("s_branch Lp3join")
    g.tail.append("\n".join(g.lines)); g.lines = keep
    g.vm = vm_active
    V.reset(PERSIST)
    g.forget()
    g(f"s_cmp_ge_u32 s{sU14}, 14\ns_cselect_b32 s{sSIGB}, 0x80000000, s{sSIG}")
    g.wait(vm="wo")
    MCA = opt.get("mca", 0)
    if MCA == 0: poll_check(g, 14, "pollA")
    g("s_barrier")
    if MCA == 0: g.ts("h3a visible")
    lds_of = lambda m: 4096 * m if m < 16 else W4L(m - 16)
    act_of = lambda m: ar(4 * m, 4) if m < 16 else ar(hreg(m - 16), 4)
    atag = lambda m: f"a{m}" if m < 16 else f"ha{m-16}"
    g.run(t2_reads(lds_of(0), 0, "w0") + t2_reads(lds_of(1), 1, "w1"))
    LA = opt.get("la", 22)
    bounds = [0, 6, 14, 22, 30, 36, 44, 52, 58, 64, 72]
    MPUB = opt.get("mpub", 6); MPOLL = opt.get("mpoll", 22); MCHK = opt.get("mchk", 30)
    nw = 22
    nh = 0
    landed = -1
    for lo, hi in zip(bounds[:-1], bounds[1:]):
        if lo > 0:
            need = min(55, hi + 1 - 16)
            tags = []
            if need > landed and need >= 0: tags.append(f"f{need}"); landed = need
            if lo == MPUB: tags.append("stH1")
            if tags: g.wait(vm=tags)
            if lo == MCA: poll_check(g, 14, "pollA")
            if lo == MCHK: poll_check(g, 14, "pollB")
            g("s_barrier")
            if lo == MCA: g.ts("h3a visible")
            if lo == MCHK: g.ts("h3b visible")
            if lo == MPUB: signal(g, vPLB, sSIGB); g.ts("h3b published")
        fw = []
        while nw < 56 and nw - 22 < lo: fw += w4_dma(nw); nw += 1
        fh = []
        lim = min(56 if lo >= MCHK else 28 if lo >= MCA else 0, hi - 16 + LA)
        while nh < lim and (nh < 40 or nh - 40 < lo - 1):
            fh += hl(nh) + hl(nh + 1); nh += 2
        if lo == MPOLL: fh += poll_issue(g, vPLB, "pollB")
        mer = []
        while fw or fh:
            mer += fh[:3]; fh = fh[3:]
            mer += fw[:6]; fw = fw[6:]
        main = []; rd = []
        for m in range(lo, hi):
            main += t2_mfma(m % 4, act_of(m), f"w{m}", atag(m), None, "0" if m == 0 else None)
            if m + 2 < 72: rd += t2_reads(lds_of(m + 2), (m + 2) % 4, f"w{m+2}")
        g.weave(main, [(rd, 2.0), (mer, len(mer) / (2.0 * (hi - lo)) + 0.01)])
        if hi == 14: g.ts("wo ~done")
    assert nw == 56 and nh == 56, (nw, nh)
    g.ts("p4 mfma done")
    vRB = V(16); pk = V(8)
    reduce_send(); reduce_recv()
    for k in range(0, 16, 2):
        if k % 4 == 0: g.wait(lg=f"rb{k//4}")
        g(f"v_pk_add_f32 {vr(vRES+k,2)}, {vr(vRES+k,2)}, {vr(vRB+k,2)}")
        g(f"v_cvt_pk_bf16_f32 v{pk+k//2}, v{vRES+k}, v{vRES+k+1}")
        if k % 8 == 6: g.vmem(f"buffer_store_dwordx4 {vr(pk+4*(k//8),4)}, v{vOUT}, s[{sOUT}:{sOUT+3}], 0 offen offset:{16*(k//8)}", "out")
    if diag:
        g.wait(vm="all")
        g.ts("end")
        g(f"s_lshl_b32 s{sT1}, s2, 2\ns_add_u32 s{sT1}, s{sT1}, s{sW}\ns_lshl_b32 s{sT1}, s{sT1}, 8\ns_add_u32 s{sT1}, s{sT1}, {WS_DIAG}\nv_lshlrev_b32 v{vPV}, 2, v{vL}")
        g(f"buffer_store_dword v{vTS}, v{vPV}, s[{sWS}:{sWS+3}], s{sT1} offen")
    if pace:
        g.wait(vm="all"); g.ts("end")
        g(f"s_nop 1\nv_readlane_b32 s{sT2}, v{vTS}, 62\ns_nop 3")
        g.label("Lpace")
        g(f"s_memrealtime s[{sTS}:{sTS+1}]\ns_waitcnt lgkmcnt(0)\ns_sub_u32 s{sT1}, s{sTS}, s{sT2}\ns_cmp_lt_u32 s{sT1}, {pace}\ns_cbranch_scc1 Lpace")
    g("s_endpgm")
    for t_ in g.tail: g(t_)
    g.label("Lend")
    lines, nn = hazard.fix(g.lines, verbose=opt.get("verbose", False))
    wf = lambda body: wrap(body, 256, 256, LDS_BYTES, 512, accum=256)
    if opt.get("align", 1):
        lines, info = align.fix(lines, wf, opt.get("minrun", 3)); print("align widened/padded/left", info)
    return wf("\n".join(lines) + "\n")

if __name__ == "__main__":
    diag = 1 if "--diag" in sys.argv else 2 if "--diag2" in sys.argv else 0
    if "--ts" in sys.argv: diag = sys.argv[sys.argv.index("--ts") + 1].split(",") + ["end"]
    out = sys.argv[1]
    pace = int(sys.argv[sys.argv.index("--pace") + 1]) if "--pace" in sys.argv else None
    opt = {}
    for a_ in sys.argv[2:]:
        if "=" in a_:
            k_, v_ = a_.split("=")
            try: opt[k_] = float(v_) if "." in v_ else int(v_)
            except ValueError: opt[k_] = v_.replace("_", " ")
    open(out, "w").write(gen(diag, pace, opt))
    if diag: open(out + ".ts", "w").write("\n".join(TSNAMES))
    print("persist", PERSIST, "peak vgpr", V.peak)
```

```python
import sys, struct, math
from collections import deque
sys.path.insert(0, "gen")
from asmlib import *
import hazard, align

WS_G, WS_O, WS_X1, WS_H3, WS_ST, WS_CNT, WS_DIAG = 0, 2 << 20, 4 << 20, 6 << 20, 14 << 20, 15 << 20, 16 << 20
WS_SIZE = 17 << 20
CNT_H, CNT_O, CNT_X, CNT_HA, CNT_HB = 0, 32, 64, 80, 96
R = 81920
TBL = R + 73728
T_MEAN, T_RSTD, T_A2 = 0, 320, 640
CS3 = TBL + 1024
LDS_BYTES = 163840
sX, sWQKV, sWO, sW1, sW2, sW3, sW4, sOUT, sWS, sDBG, sCODE = 4, 8, 12, 16, 20, 24, 28, 32, 36, 40, 44
sW, sRQ, sC8, sRB, sU14, sROT, sW1K, sSPIN = 48, 49, 50, 51, 52, 53, 54, 55
sXK, sW1Ks, sQK = 56, 64, 72
sT0, sT1, sT2, sT3 = 80, 81, 82, 83
sM1, sM2, sM3, sMD = 84, 86, 88, 90
sMZ = 92
sTS = 96
sA0 = 98
sXB = 99
sC1 = 100
sSIG, sPOL, sSIGB = 0, 1, 53
sTAU, sTO1, sTO2 = 99, 92, 93
sCT = 3
SPINMAX = 200000
EPS = 1e-5
def f2u(x): return struct.unpack("<I", struct.pack("<f", x))[0]
def fl(x): return hex(f2u(x))
GC0 = -2 * math.sqrt(2 / math.pi) * math.log2(math.e)
GC1 = GC0 * 0.044715
QSCALE = 0.25 * math.log2(math.e)
TSNAMES = []

class Alloc:
    def __init__(self, lo, hi): self.p = lo; self.hi = hi; self.peak = lo
    def __call__(self, n=1, al=None):
        al = al or (2 if n > 1 else 1)
        self.p = (self.p + al - 1) // al * al
        r = self.p; self.p += n
        assert self.p <= self.hi, f"out of regs {self.p}"
        self.peak = max(self.peak, self.p)
        return r
    def mark(self): return self.p
    def reset(self, m): self.p = m

class G(Asm):
    def __init__(self, diag=False):
        super().__init__()
        self.vm = []; self.lg = []; self.diag = diag; self.nts = 0; self.seen = set(); self.tail = []
    def vmem(self, s, tag=None):
        self(s); self.vm.append(tag); self.seen.add(("v", tag)); assert len(self.vm) <= 63, "too many vmem outstanding"
    def ds(self, s, tag=None):
        self(s); self.lg.append(tag); self.seen.add(("l", tag))
    def _n(self, lst, tag):
        tags = tag if isinstance(tag, (list, tuple)) else [tag]
        idx = [i for i, t in enumerate(lst) if t in tags]
        if not idx: return None
        return len(lst) - 1 - idx[-1]
    def wait(self, vm=None, lg=None):
        parts = []
        for k_, t_ in (("v", vm), ("l", lg)):
            if t_ is not None and t_ != "all":
                for x_ in (t_ if isinstance(t_, (list, tuple)) else [t_]): assert (k_, x_) in self.seen, f"wait on unissued tag {x_}"
        if vm is not None:
            n = (0 if self.vm else None) if vm == "all" else self._n(self.vm, vm)
            if n is not None:
                parts.append(f"vmcnt({n})"); self.vm = self.vm[len(self.vm) - n:] if n else []
        if lg is not None:
            n = (0 if self.lg else None) if lg == "all" else self._n(self.lg, lg)
            if n is not None:
                n = min(n, 15); parts.append(f"lgkmcnt({n})"); self.lg = self.lg[len(self.lg) - n:] if n else []
        if parts: self("s_waitcnt " + " ".join(parts))
    def forget(self):
        self.seen = {x for x in self.seen if x[0] == "v" or x[1] in self.lg or x[1] == "cs"}
    def ts(self, name):
        if getattr(self, "pacets", None) == name:
            self(f"s_memrealtime s[{sTS}:{sTS+1}]\ns_waitcnt lgkmcnt(0)\nv_writelane_b32 v{vTS}, s{sTS}, 62"); self.lg = []
        if not self.diag or (self.diag == 2 and name != "end") or (self.diag == 1 and name.startswith("f:")) or (isinstance(self.diag, list) and name not in self.diag): return
        self.c(f"TS {self.nts} {name}")
        self(f"{'s_memrealtime' if getattr(self, 'rt', 0) else 's_memtime'} s[{sTS}:{sTS+1}]\ns_waitcnt lgkmcnt(0)\nv_writelane_b32 v{vTS}, s{sTS}, {self.nts}")
        self.lg = []
        TSNAMES.append(name); self.nts += 1
    def I(self, s, cost=1): return [(lambda s=l: self(s), cost) for l in s.strip().split("\n")]
    def Ids(self, s, tag=None): return [(lambda: self.ds(s, tag), 1)]
    def Ivm(self, s, tag=None, w=1.0):
        f = lambda: self.vmem(s, tag)
        f.vm = w
        return [(f, 1)]
    def est(self, n0):
        t = 0; mf = False
        for l in self.lines[n0:]:
            op = l.split()[0] if l.strip() else ";"
            if op.startswith(";") or op.endswith(":"): continue
            if op.startswith("v_mfma"): t += 32 if "32x32" in op else 16; mf = True
            elif op.startswith(("v_exp", "v_rcp", "v_rsq", "v_permlane")): t += 8
            else: t += 4
        return t, mf
    def weave_t(self, main, fills=(), vm=(), period=76, start=0, stop=None, flush=True):
        qs = [[deque(it), rate, 0.0] for it, rate in fills]
        vq = deque(); tt = start; grp = []
        for it in vm:
            grp.append(it)
            if hasattr(it[0], "vm"):
                d = period * it[0].vm
                for k, x in enumerate(grp): vq.append((tt + d * k / len(grp), x))
                tt += d; grp = []
        for x in grp: vq.append((tt, x))
        t = 0
        for m in main:
            n0 = len(self.lines); m(); dt, mf = self.est(n0)
            if mf: dt = max(16 if dt < 32 else 32, dt - 4 * 0) if False else (32 if dt >= 32 else 16)
            t += dt
            n1 = len(self.lines)
            for q in qs:
                q[2] += q[1]
                while q[0] and q[2] >= q[0][0][1] - 1e-9:
                    f, c = q[0].popleft(); f(); q[2] -= c
            k = 0
            while vq and vq[0][0] <= t and (stop is None or t <= stop) and k < 3:
                vq.popleft()[1][0](); k += 1
            if not mf: t += self.est(n1)[0]
        rest = [list(q[0]) for q in qs] + [[x for _, x in vq]]
        if flush:
            for r in rest: self.run(r)
        return rest
    def Idma(self, srd, voff, soff, lds, tag):
        sreg, imm = soff
        lreg, limm = lds if isinstance(lds, tuple) else (sW1K, lds)
        it = self.I(f"s_add_u32 m0, s{lreg}, {limm}")
        if sreg is None: it += self.I(f"s_mov_b32 s{sT0}, {imm}"); so = f"s{sT0}"
        elif imm == 0: so = f"s{sreg}"
        else: it += self.I(f"s_add_u32 s{sT0}, s{sreg}, {imm}"); so = f"s{sT0}"
        it += self.Ivm(f"buffer_load_dwordx4 v{voff}, s[{srd}:{srd+3}], {so} offen lds", tag)
        return it
    def run(self, items):
        for f, c in items: f()
    def weave(self, main, fills, flush=True):
        qs = [[deque(it), rate, 0.0] for it, rate in fills]
        for m in main:
            m()
            for q in qs:
                q[2] += q[1]
                while q[0] and q[2] >= q[0][0][1] - 1e-9:
                    f, c = q[0].popleft(); f(); q[2] -= c
        rest = [list(q[0]) for q in qs]
        if flush:
            for r in rest: self.run(r)
        return rest

V = Alloc(0, 256)
v0_ = V(); vL = V(); vW1024 = V(); vW3072 = V(); vW3584 = V()
vTR16a = V(); vTR16b = V(); vTS = V()
vXr0 = V(2); vXh0 = V(2); vL128 = V(); vDUM = V()
vAG = V(); vAO = V(); vAX = V(); vAH = V(2); vSTL = V()
vSX = V(); vSS = V(); vSH = V(2)
vONE = V(4); vSEL = V(4); vGC0 = V(2); vPA = V(2); vXS = V(2); vXT = V(8)
vRES = V(16); vAC1 = V(16)
vGAo = V(2); vOUT = V(); vT2 = V(6); v3 = V(5); vPLH = V(); vPLX = V(); vPLO = V(); vPLA = V(); vPLB = V(); vPV = V()
vTC = V(); vTRW = V(); vRD = V(2); vCW = V(); vCR = V(); vSG = V(); vPG = V()
vBI = V(16); vAM = V(8)
PERSIST = V.mark()
sW4T = [72, 73, 74, 75, 76, 77, 78, 79, 84, 85, 86, 87, 88, 89]

def MF16(g, d, a, b, c=None): g(f"v_mfma_f32_16x16x32_bf16 {d}, {a}, {b}, {c if c is not None else d}")
def MF32(g, d, a, b, c=None): g(f"v_mfma_f32_32x32x16_bf16 {d}, {a}, {b}, {c if c is not None else d}")

def gelu_pk(regs, tmp):
    t = [tmp + 2 * i for i in range(len(regs))]
    L = []
    for i, r in enumerate(regs): L.append(f"v_pk_mul_f32 {vr(t[i],2)}, {vr(r,2)}, {vr(r,2)}")
    for i, r in enumerate(regs): L.append(f"v_pk_fma_f32 {vr(t[i],2)}, {vr(t[i],2)}, s[{sC1}:{sC1+1}], {vr(vGC0,2)}")
    for i, r in enumerate(regs): L.append(f"v_pk_mul_f32 {vr(t[i],2)}, {vr(t[i],2)}, {vr(r,2)}")
    for i, r in enumerate(regs): L += [f"v_exp_f32 v{t[i]}, v{t[i]}", f"v_exp_f32 v{t[i]+1}, v{t[i]+1}"]
    for i, r in enumerate(regs): L.append(f"v_pk_add_f32 {vr(t[i],2)}, {vr(t[i],2)}, 1.0 op_sel_hi:[1,0]")
    for i, r in enumerate(regs): L += [f"v_rcp_f32 v{t[i]}, v{t[i]}", f"v_rcp_f32 v{t[i]+1}, v{t[i]+1}"]
    for i, r in enumerate(regs): L.append(f"v_pk_mul_f32 {vr(r,2)}, {vr(r,2)}, {vr(t[i],2)}")
    return L

def norm_pk(acc, cs, st, n):
    L = []
    for k in range(0, n, 2):
        L.append(f"v_pk_fma_f32 {vr(acc+k,2)}, {vr(cs+k,2)}, {vr(st,2)}, {vr(acc+k,2)} op_sel:[0,0,0] op_sel_hi:[1,0,1] neg_lo:[0,1,0] neg_hi:[0,1,0]")
    for k in range(0, n, 2):
        L.append(f"v_pk_mul_f32 {vr(acc+k,2)}, {vr(acc+k,2)}, {vr(st,2)} op_sel:[0,1] op_sel_hi:[1,1]")
    return L

def valu_main(g, L): return [(lambda s=s: g(s)) for s in L]

def signal(g, addr_v, soob=None):
    g(f"v_or_b32 v{vSG}, s{soob or sSIG}, v{addr_v}\ns_mov_b64 exec, 1")
    g.vmem(f"buffer_atomic_add v{vPA+1}, v{vSG}, s[{sWS}:{sWS+3}], 0 offen sc1", "sig")
    g("s_mov_b64 exec, -1")

def poll_issue(g, addr_v, tag, srd=None):
    srd = srd or sWS
    return g.I(f"v_or_b32 v{vPG}, s{sPOL}, v{addr_v}") + g.Ivm(f"buffer_load_dword v{vPV}, v{vPG}, s[{srd}:{srd+3}], 0 offen sc1", tag, 0.2)

def poll_check(g, target, tag, sleep=4, srd=None):
    srd = srd or sWS
    lab = g.newlabel("Lpoll"); done = g.newlabel("Lpolld")
    g.wait(vm=tag)
    g(f"v_or_b32 v{vPV}, s{sPOL}, v{vPV}\nv_cmp_gt_u32 vcc, {target}, v{vPV}\ns_mov_b32 s{sSPIN}, {SPINMAX}\ns_nop 3\ns_cbranch_vccnz {lab}")
    g.label(done)
    g.tail.append(f"{lab}:\ns_sleep {sleep}\nbuffer_load_dword v{vPV}, v{vPG}, s[{srd}:{srd+3}], 0 offen sc1\ns_sub_u32 s{sSPIN}, s{sSPIN}, 1\ns_cbranch_scc1 {done}\ns_waitcnt vmcnt(0)\n"
                  f"v_cmp_gt_u32 vcc, {target}, v{vPV}\ns_nop 4\ns_cbranch_vccnz {lab}\ns_branch {done}")

def gen(diag=False, pace=None, opt=None):
    opt = opt or {}
    TSNAMES.clear()
    V.reset(PERSIST)
    g = G(diag); g.pacets = opt.get("pacets"); g.rt = opt.get("rt", 0)
    cat = lambda its: sum(its, [])
    g("s_cmp_ge_u32 s2, 256\ns_cbranch_scc1 Lend")
    SRDS = ((sX, 0, 2 << 20), (sW1, 32, 1 << 19), (sWQKV, 8, 3 << 19), (sWS, 80, WS_SIZE), (sDBG, 72, 256), (sW2, 40, 1 << 19), (sW3, 48, 7 << 18), (sW4, 56, 7 << 18), (sWO, 16, 1 << 19), (sOUT, 64, 2 << 20))
    for srd, off, n in SRDS: g(f"s_load_dwordx2 s[{srd}:{srd+1}], s[0:1], {off}")
    if diag or pace: g(f"v_mov_b32 v{vTS}, 0\ns_memrealtime s[{sMZ}:{sMZ+1}]\ns_memtime s[{sMZ+2}:{sMZ+3}]")
    g(f"s_getpc_b64 s[{sCODE}:{sCODE+1}]")
    g.label("Lpc")
    g(f"s_mov_b32 s{sCODE+2}, Lend-Lpc\ns_mov_b32 s{sCODE+3}, 0x20000")
    t0, t1, t2, t3 = V(), V(), V(), V()
    c_, g_, e_, q_, lp = V(), V(), V(), V(), V()
    KEEP = V.mark()
    vXd0, vXd1, vXh = V(), V(), V()
    g(f"v_and_b32 v{vL}, 63, v0\nv_lshrrev_b32 v{t0}, 6, v0\nv_lshlrev_b32 v{t1}, 7, v0\nv_readfirstlane_b32 s{sW}, v{t0}")
    g(f"s_lshl_b32 s{sCT}, s2, 12\ns_and_b32 s{sCT}, s{sCT}, 0x8000")
    g.vmem(f"buffer_load_dword v{vDUM}, v{t1}, s[{sCODE}:{sCODE+3}], s{sCT} offen", "touch")
    g(f"s_lshr_b32 s{sT0}, s2, 3")
    g(f"s_and_b32 s{sT1}, s2, 6\ns_lshl_b32 s{sT1}, s{sT1}, 2\ns_lshr_b32 s{sT2}, s{sT0}, 2\ns_add_u32 s{sRQ}, s{sT1}, s{sT2}")
    g(f"s_and_b32 s{sT1}, s2, 1\ns_lshl_b32 s{sT2}, s{sT1}, 2\ns_and_b32 s{sC8}, s{sT0}, 3\ns_add_u32 s{sC8}, s{sC8}, s{sT2}")
    g(f"s_lshl_b32 s{sT2}, s{sC8}, 1\ns_add_u32 s{sROT}, s{sRQ}, s{sT2}\ns_add_u32 s{sROT}, s{sROT}, s{sT1}\ns_and_b32 s{sROT}, s{sROT}, 7")
    g(f"s_lshl_b32 s{sW1K}, s{sW}, 10\ns_lshl_b32 s{sXB}, s{sW}, 14")
    for srd, off, n in SRDS[:2]: g(f"s_mov_b32 s{srd+2}, {n}\ns_mov_b32 s{srd+3}, 0x20000")
    def rot_tab(i): return f"s_add_u32 s{sT1}, s{sROT}, {i}\ns_and_b32 s{sT1}, s{sT1}, 7\ns_lshl_b32 s{sXK+i}, s{sT1}, 7\ns_lshl_b32 s{sW1Ks+i}, s{sT1}, 16"
    g(f"s_lshl_b32 s{sXK}, s{sROT}, 7\ns_lshl_b32 s{sW1Ks}, s{sROT}, 16")
    g(f"v_lshrrev_b32 v{t0}, 3, v{vL}\nv_and_b32 v{t1}, 7, v{vL}")
    g(f"v_lshrrev_b32 v{g_}, 4, v{vL}\nv_xor_b32 v{t2}, v{g_}, v{t1}\nv_lshlrev_b32 v{t2}, 4, v{t2}")
    g(f"v_lshl_add_u32 v{t2}, v{t0}, 11, v{t2}")
    g(f"s_lshr_b32 s{sT1}, s{sW}, 1\ns_lshl_b32 s{sT1}, s{sT1}, 5\ns_and_b32 s{sT2}, s{sW}, 1\ns_add_u32 s{sT1}, s{sT1}, s{sT2}")
    g(f"s_lshl_b32 s{sT3}, s{sRQ}, 6\ns_add_u32 s{sT1}, s{sT1}, s{sT3}\ns_lshl_b32 s{sT1}, s{sT1}, 10")
    g(f"v_add_u32 v{vXd0}, s{sT1}, v{t2}\nv_xor_b32 v{vXd1}, 64, v{vXd0}\nv_add_u32 v{vXd1}, 16384, v{vXd1}")
    g(f"s_add_u32 s{sT1}, s{sT3}, s{sT2}\ns_sub_u32 s{sT1}, s{sT1}, 16\ns_lshl_b32 s{sT1}, s{sT1}, 10\ns_lshl_b32 s{sT3}, s{sT2}, 6")
    g(f"v_xor_b32 v{vXh}, s{sT3}, v{t2}\nv_add_u32 v{vXh}, s{sT1}, v{vXh}")
    g(f"v_lshlrev_b32 v{t3}, 1, v{t0}\nv_and_b32 v{t3}, 4, v{t3}\nv_xor_b32 v{t3}, v{t3}, v{t1}\ns_lshl_b32 s{sT2}, s{sT2}, 1\nv_xor_b32 v{t3}, s{sT2}, v{t3}\nv_lshlrev_b32 v{t3}, 4, v{t3}")
    g(f"s_lshl_b32 s{sT1}, s{sW}, 3\nv_add_u32 v{t2}, s{sT1}, v{t0}")
    g(f"s_lshl_b32 s{sT1}, s{sC8}, 7\nv_add_u32 v{t0}, s{sT1}, v{t3}")
    g(f"v_lshl_add_u32 v{vW1024}, v{t2}, 10, v{t0}")
    g("s_waitcnt lgkmcnt(0)")
    if diag or pace: g(f"v_writelane_b32 v{vTS}, s{sMZ}, 63\nv_writelane_b32 v{vTS}, s{sMZ}, 62\nv_writelane_b32 v{vTS}, s{sMZ if g.rt else sMZ+2}, 0")
    if diag: TSNAMES.append("entry"); g.nts = 1
    g.ts("kernarg")
    W1L = lambda i: R + 8192 * (i + 1)
    def p1a_dma(i):
        it = g.Idma(sX, vXd0, (sXK + i, 0), (sXB, i * 2048), f"c{i}") + g.Idma(sX, vXd1, (sXK + i, 0), (sXB, i * 2048 + 1024), f"c{i}")
        for t in range(2): it += g.Idma(sW1, vW1024, (sW1Ks + i, t * 32768), W1L(i) + t * 4096, f"c{i}")
        return it
    NPRE = opt.get("npre", 2)
    T0 = opt.get("touch0", 0)
    if T0:
        g(f"v_lshlrev_b32 v{vL128}, 7, v{vL}")
        if T0 & 4: g(f"s_and_b32 s{sT1}, s{sC8}, 3\ns_lshl_b32 s{sT1}, s{sT1}, 2\ns_add_u32 s{sT1}, s{sT1}, s{sW}\ns_lshl_b32 s{sT1}, s{sT1}, 12\ns_bfm_b64 exec, 32, 0")
        else: g(f"s_lshl_b32 s{sT1}, s{sC8}, 2\ns_add_u32 s{sT1}, s{sT1}, s{sW}\ns_lshl_b32 s{sT1}, s{sT1}, 11\ns_bfm_b64 exec, 16, 0")
        g(f"s_lshl_b32 s{sT2}, s{sRQ}, 16\ns_add_u32 s{sT1}, s{sT1}, s{sT2}")
        g.vmem(f"buffer_load_dword v{vDUM}, v{vL128}, s[{sX}:{sX+3}], s{sT1} offen", "touch")
        g(f"s_lshl_b32 s{sT1}, s2, 2\ns_add_u32 s{sT1}, s{sT1}, s{sW}\ns_lshl_b32 s{sT2}, s{sT1}, 9\ns_mov_b64 exec, 15")
        g.vmem(f"buffer_load_dword v{vDUM}, v{vL128}, s[{sW1}:{sW1+3}], s{sT2} offen", "touch")
        if T0 & 2:
            g(f"s_mov_b32 s{sWQKV+2}, {3<<19}\ns_mov_b32 s{sWQKV+3}, 0x20000\ns_mul_i32 s{sT2}, s{sT1}, {12*128}\ns_bfm_b64 exec, 12, 0")
            g.vmem(f"buffer_load_dword v{vDUM}, v{vL128}, s[{sWQKV}:{sWQKV+3}], s{sT2} offen", "touch")
        g("s_mov_b64 exec, -1")
    g.run(p1a_dma(0))
    for i in range(1, NPRE): g(rot_tab(i)); g.run(p1a_dma(i))
    for i in range(NPRE, 8): g(rot_tab(i))
    def halo():
        g(f"s_lshr_b32 s{sT1}, s{sW}, 1\ns_lshl_b32 s{sT2}, s{sT1}, 13\ns_and_b32 s{sT3}, s{sW}, 1\ns_lshl_b32 s{sT3}, s{sT3}, 10\ns_add_u32 s{sA0}, s{sT2}, s{sT3}")
        g(f"s_lshl_b32 s{sT1}, s{sT1}, 9\ns_mov_b32 exec_lo, 0xffffff00")
        for q in range(4):
            it = g.Idma(sX, vXh, (sT2, 0), (sA0, 65536 + q * 2048), "c0")
            g.run(it[:1]); g(f"s_xor_b32 s{sT2}, s{sXK+q}, s{sT1}"); g.run(it[1:])
        g("s_mov_b32 exec_lo, -1")
    HL = opt.get('halolate', 1)
    if not HL: halo()
    for srd, off, n in SRDS[2:]: g(f"s_mov_b32 s{srd+2}, {n}\ns_mov_b32 s{srd+3}, 0x20000")
    g(f"v_lshlrev_b32 v{vL128}, 7, v{vL}")
    def touch(srd, nl, atomic=False):
        if atomic:
            it = touch(srd, nl); return [(lambda: g.run(it), 1)]
        return g.I(f"s_lshl_b32 s{sT3}, s2, 2\ns_add_u32 s{sT3}, s{sT3}, s{sW}\ns_mul_i32 s{sT3}, s{sT3}, {nl*128}\ns_bfm_b64 exec, {nl}, 0") + \
               g.Ivm(f"buffer_load_dword v{vDUM}, v{vL128}, s[{srd}:{srd+3}], s{sT3} offen", "touch") + g.I("s_mov_b64 exec, -1")
    if opt.get("touch1", 0) == 1: g.run(touch(sWQKV, 12))
    g(f"s_or_b32 s{sT1}, s2, s{sW}\ns_cbranch_scc0 Lz")
    g.label("Lnz")
    g.tail.append(f"Lz:\nv_add_u32 v{vPV}, {WS_CNT}, v{vL128}\nv_mov_b32 v{vPA}, 0\ns_mov_b32 s{sT1}, 8192\n"
                  f"buffer_store_dword v{vPA}, v{vPV}, s[{sWS}:{sWS+3}], 0 offen sc1\nbuffer_store_dword v{vPA}, v{vPV}, s[{sWS}:{sWS+3}], s{sT1} offen sc1\ns_branch Lnz")
    S = []
    def s(x): S.extend(x.split("\n"))
    vXp = V(8); vTP = V(4); vGAh = V(2); vXTa = V(2); vXSa = V()
    s(f"v_mul_u32_u24 v{vW3072}, 3072, v{t2}\nv_add_u32 v{vW3072}, v{vW3072}, v{t0}")
    s(f"s_lshr_b32 s{sRB}, s{sRQ}, 1\ns_and_b32 s{sT1}, s2, 1\ns_mul_i32 s{sT1}, s{sT1}, 7\ns_bfe_u32 s{sT2}, s2, 0x30003\ns_add_u32 s{sU14}, s{sT1}, s{sT2}\ns_cmp_eq_u32 s{sT2}, 7\ns_cselect_b32 s{sU14}, 14, s{sU14}")
    s(f"s_lshl_b32 s{sT1}, s{sU14}, 8\nv_add_u32 v{t0}, s{sT1}, v{t3}\nv_mul_u32_u24 v{vW3584}, 3584, v{t2}\nv_add_u32 v{vW3584}, v{vW3584}, v{t0}")
    for i in range(8): s(f"s_mul_i32 s{sQK+i}, s{sW1Ks+i}, 3")
    for i in range(4): s(f"v_mov_b32 v{vONE+i}, 0x3f803f80")
    s(f"v_lshrrev_b32 v{t0}, 3, v{vL}\nv_lshlrev_b32 v{t0}, 11, v{t0}\nv_lshl_add_u32 v{t0}, v{t1}, 4, v{t0}\nv_add_u32 v{t0}, 65536, v{t0}")
    S.append(("ds", f"ds_write_b128 v{t0}, {vr(vONE,4)}")); S.append(("ds", f"ds_write_b128 v{t0}, {vr(vONE,4)} offset:1024"))
    s(f"v_mov_b32 v{vPA}, 0\nv_mov_b32 v{vPA+1}, 1")
    s(f"v_and_b32 v{c_}, 15, v{vL}\nv_bfe_u32 v{e_}, v{vL}, 2, 2\nv_and_b32 v{q_}, 3, v{vL}")
    s(f"v_lshrrev_b32 v{t0}, 1, v{c_}\nv_xor_b32 v{t0}, v{t0}, v{g_}\nv_lshlrev_b32 v{t0}, 4, v{t0}\nv_lshl_add_u32 v{vXr0}, v{c_}, 7, v{t0}")
    s(f"v_xor_b32 v{vXr0+1}, 64, v{vXr0}\nv_add_u32 v{vXh0}, 65536, v{vXr0}\nv_add_u32 v{vXh0+1}, 65536, v{vXr0+1}")
    s(f"v_lshrrev_b32 v{t0}, 1, v{q_}\ns_lshl_b32 s{sT1}, s{sW}, 1\nv_add_u32 v{t0}, s{sT1}, v{t0}")
    s(f"v_lshlrev_b32 v{t1}, 1, v{e_}\nv_and_b32 v{t1}, 4, v{t1}\nv_and_b32 v{t2}, 1, v{g_}\nv_lshl_add_u32 v{t2}, v{t2}, 1, v{t1}\nv_xor_b32 v{t0}, v{t0}, v{t2}")
    s(f"v_lshl_add_u32 v{t2}, v{g_}, 3, v{e_}\nv_lshlrev_b32 v{t2}, 7, v{t2}\nv_lshl_add_u32 v{t0}, v{t0}, 4, v{t2}\nv_and_b32 v{t2}, 1, v{q_}\nv_lshl_add_u32 v{t0}, v{t2}, 3, v{t0}")
    s(f"v_add_u32 v{vTR16a}, {R}, v{t0}\nv_add_u32 v{vTR16b}, {R+36864}, v{t0}")
    for i in range(4):
        s(f"s_xor_b32 s{sT1}, s{sW}, {i}\ns_lshl_b32 s{sT1}, s{sT1}, 14\nv_add_u32 v{vXp+2*i}, s{sT1}, v{vXr0}\nv_add_u32 v{vXp+2*i+1}, s{sT1}, v{vXr0+1}")
    n_s1a = len(S)
    s(f"v_mov_b32 v{vGC0}, {fl(GC0)}\nv_mov_b32 v{vGC0+1}, {fl(GC0)}\ns_mov_b32 s{sC1}, {fl(GC1)}\ns_mov_b32 s{sC1+1}, {fl(GC1)}")
    s(f"s_mov_b32 s{sM1}, 0x22222222\ns_mov_b32 s{sM1+1}, 0x22222222\ns_mov_b32 s{sM2}, 0x44444444\ns_mov_b32 s{sM2+1}, 0x44444444")
    s(f"s_mov_b32 s{sM3}, 0x88888888\ns_mov_b32 s{sM3+1}, 0x88888888\ns_mov_b32 s{sMD}, 0x00F0000F\ns_mov_b32 s{sMD+1}, 0xF0000F00")
    s(f"v_lshlrev_b32 v{vTC}, 2, v{c_}\nv_add_u32 v{vTC}, {TBL}, v{vTC}")
    for i in range(4): s(f"s_xor_b32 s{sT1}, s{sW}, {i}\ns_lshl_b32 s{sT1}, s{sT1}, 6\nv_add_u32 v{vTP+i}, s{sT1}, v{vTC}")
    def act_store_addr(dst, P, natural, shift, base):
        a0, a1, a2 = t0, t1, t2
        s(f"v_bfe_u32 v{a0}, v{vL}, 4, 1\nv_add_u32 v{a0}, {2*P}, v{a0}")
        if not natural: s(f"v_xor_b32 v{a0}, s{sW}, v{a0}")
        s(f"v_and_b32 v{a1}, 1, v{a0}\nv_lshrrev_b32 v{a0}, 1, v{a0}\nv_lshl_add_u32 v{a0}, v{a0}, 5, v{a1}\nv_lshl_add_u32 v{a0}, v{c_}, 1, v{a0}")
        s(f"s_lshl_b32 s{sT1}, s{sRQ}, 6")
        if shift: s(f"s_add_u32 s{sT1}, s{sT1}, s{sT3}")
        s(f"v_add_u32 v{a0}, s{sT1}, v{a0}")
        if shift: s(f"v_cmp_gt_u32 s[{sMZ+2*P}:{sMZ+2*P+1}], s{sT2}, v{a0}\nv_and_b32 v{a0}, 2047, v{a0}")
        s(f"v_lshrrev_b32 v{a1}, 5, v{a0}\nv_lshlrev_b32 v{a1}, 15, v{a1}\nv_and_b32 v{a2}, 1, v{a0}\nv_lshl_add_u32 v{a1}, v{a2}, 8, v{a1}\nv_bfe_u32 v{a2}, v{a0}, 1, 4\nv_lshl_add_u32 v{a1}, v{a2}, 4, v{a1}")
        s(f"v_lshrrev_b32 v{a2}, 5, v{vL}\nv_lshl_add_u32 v{a1}, v{a2}, 9, v{a1}")
        s(f"s_lshl_b32 s{sT1}, s{sC8}, 2\ns_add_u32 s{sT1}, s{sT1}, s{sW}\ns_lshl_b32 s{sT1}, s{sT1}, 10\ns_add_u32 s{sT1}, s{sT1}, {base}\nv_add_u32 v{dst}, s{sT1}, v{a1}")
    S.append(("blk", f"s_lshr_b32 s{sT3}, s{sC8}, 2\ns_add_u32 s{sT3}, s{sT3}, 1\ns_sub_u32 s{sT2}, 0, s{sT3}\ns_bitcmp1_b32 s{sC8}, 1\ns_cselect_b32 s{sT3}, s{sT2}, s{sT3}\ns_movk_i32 s{sT2}, 2048"))
    act_store_addr(vGAh, 0, False, True, WS_G); act_store_addr(vGAh + 1, 1, False, True, WS_G)
    s(f"v_lshrrev_b32 v{t1}, 1, v{c_}\nv_lshrrev_b32 v{t2}, 5, v{vL}\nv_lshlrev_b32 v{t2}, 1, v{t2}\ns_and_b32 s{sT1}, s{sW}, 2\ns_lshl_b32 s{sT1}, s{sT1}, 1\nv_add_u32 v{t2}, s{sT1}, v{t2}")
    s(f"v_xor_b32 v{t1}, v{t1}, v{t2}\nv_lshlrev_b32 v{t1}, 4, v{t1}\nv_lshl_add_u32 v{t1}, v{c_}, 7, v{t1}\nv_bfe_u32 v{t2}, v{vL}, 4, 1\nv_lshl_add_u32 v{t1}, v{t2}, 14, v{t1}")
    s(f"s_sub_u32 s{sT1}, s{sC8}, s{sROT}\ns_and_b32 s{sT1}, s{sT1}, 7\ns_lshl_b32 s{sT1}, s{sT1}, 11\ns_and_b32 s{sT2}, s{sW}, 1\ns_lshl_b32 s{sT3}, s{sT2}, 15\ns_add_u32 s{sT1}, s{sT1}, s{sT3}\nv_add_u32 v{vXTa}, s{sT1}, v{t1}\nv_xor_b32 v{vXTa+1}, 16, v{vXTa}")
    s(f"v_and_b32 v{t0}, 31, v{vL}\nv_lshlrev_b32 v{vXSa}, 2, v{t0}\ns_lshl_b32 s{sT2}, s{sT2}, 7\ns_add_u32 s{sT2}, s{sT2}, {TBL}\nv_add_u32 v{vXSa}, s{sT2}, v{vXSa}")
    S.append(("blk", f"s_cmp_eq_u32 s{sW}, 0\ns_cselect_b32 s{sSIG}, 0, 0x80000000\ns_cmp_eq_u32 s{sW}, {opt.get('pw', 3)}\ns_cselect_b32 s{sPOL}, 0, 0x80000000"))
    S1 = S
    S = []
    s(f"v_min_u32 v{t0}, 2, v{vL}\nv_mul_u32_u24 v{t1}, v{t0}, v{t0}\nv_mul_u32_u24 v{t1}, 3, v{t1}\nv_mul_u32_u24 v{t0}, 5, v{t0}\nv_sub_u32 v{t0}, v{t1}, v{t0}\nv_ashrrev_i32 v{t0}, 1, v{t0}")
    s(f"v_add_u32 v{t0}, s{sRQ}, v{t0}\nv_and_b32 v{t0}, 31, v{t0}\nv_lshlrev_b32 v{t0}, 7, v{t0}\nv_add_u32 v{vPLH}, {WS_CNT + CNT_H*128}, v{t0}")
    for reg, sr_, base in ((vPLX, sRB, CNT_X), (vPLO, sRQ, CNT_O), (vPLA, sRB, CNT_HA), (vPLB, sRB, CNT_HB)):
        s(f"s_lshl_b32 s{sT1}, s{sr_}, 7\ns_add_u32 s{sT1}, s{sT1}, {WS_CNT + base*128}\nv_mov_b32 v{reg}, s{sT1}")
    s(f"s_lshl_b32 s{sT2}, s{sRQ}, 1\ns_and_b32 s{sT1}, s{sW}, 1\ns_add_u32 s{sT2}, s{sT2}, s{sT1}")
    s(f"s_lshr_b32 s{sT1}, s{sW}, 1\ns_lshl_b32 s{sT1}, s{sT1}, 10\nv_lshl_add_u32 v{t0}, v{vL}, 4, s{sT1}")
    s(f"s_lshl_b32 s{sT3}, s{sT2}, 15\nv_add_u32 v{vAG}, s{sT3}, v{t0}\nv_add_u32 v{vAO}, {WS_O}, v{vAG}")
    s(f"s_mul_i32 s{sT1}, s{sT2}, 114688\ns_add_u32 s{sT1}, s{sT1}, {WS_H3}\nv_add_u32 v{vAH}, s{sT1}, v{t0}\nv_add_u32 v{vAH+1}, 4096, v{vAH}")
    s(f"v_and_b32 v{t0}, 31, v{vL}\nv_lshlrev_b32 v{t0}, 4, v{t0}\nv_lshrrev_b32 v{t1}, 5, v{vL}\nv_lshl_add_u32 v{t0}, v{t1}, 10, v{t0}")
    s(f"v_lshlrev_b32 v{vOUT}, 11, v{c_}\nv_bfe_u32 v{t2}, v{vL}, 4, 1\nv_lshl_add_u32 v{vOUT}, v{t2}, 10, v{vOUT}\nv_lshl_add_u32 v{vOUT}, v{t1}, 5, v{vOUT}\nv_add_u32 v{vOUT}, s{sT3}, v{vOUT}")
    s(f"v_add_u32 v{vSX}, s{sT3}, v{t0}\ns_lshl_b32 s{sT1}, s{sC8}, 1\ns_lshr_b32 s{sT3}, s{sW}, 1\ns_add_u32 s{sT1}, s{sT1}, s{sT3}")
    s(f"s_lshl_b32 s{sT3}, s{sT1}, 6\nv_add_u32 v{vOUT}, s{sT3}, v{vOUT}\ns_lshl_b32 s{sT3}, s{sT1}, 11\ns_add_u32 s{sT3}, s{sT3}, {WS_X1}\nv_add_u32 v{vSX}, s{sT3}, v{vSX}")
    s(f"s_lshl_b32 s{sT3}, s{sT2}, 4\ns_add_u32 s{sT3}, s{sT3}, s{sT1}\ns_lshl_b32 s{sT3}, s{sT3}, 8\ns_add_u32 s{sT3}, s{sT3}, {WS_ST}\nv_lshl_add_u32 v{vSS}, v{vL}, 2, s{sT3}")
    s(f"s_lshl_b32 s{sT2}, s{sRB}, 2\ns_add_u32 s{sT2}, s{sT2}, s{sW}")
    s(f"s_lshl_b32 s{sT1}, s{sT2}, 15\ns_add_u32 s{sT1}, s{sT1}, {WS_X1}\nv_lshl_add_u32 v{vAX}, v{vL}, 4, s{sT1}")
    s(f"s_lshl_b32 s{sT1}, s{sT2}, 12\ns_add_u32 s{sT1}, s{sT1}, {WS_ST}\nv_lshl_add_u32 v{vSTL}, v{vL}, 2, s{sT1}")
    s(f"s_mul_i32 s{sT1}, s{sT2}, 114688\ns_lshl_b32 s{sT3}, s{sU14}, 13\ns_add_u32 s{sT1}, s{sT1}, s{sT3}\ns_add_u32 s{sT1}, s{sT1}, {WS_H3}\nv_add_u32 v{vSH}, s{sT1}, v{t0}\nv_add_u32 v{vSH+1}, 4096, v{vSH}")
    s(f"v_lshlrev_b32 v{vCR}, 6, v{t1}\nv_add_u32 v{vCR}, {CS3}, v{vCR}")
    s(f"v_lshlrev_b32 v{t1}, 1, v{e_}\nv_and_b32 v{t1}, 4, v{t1}")
    s(f"v_and_b32 v{t0}, 1, v{q_}\nv_and_b32 v{t2}, 1, v{g_}\nv_lshl_add_u32 v{t0}, v{t0}, 1, v{t2}")
    s(f"v_and_b32 v{t2}, 2, v{g_}\nv_add_u32 v{t3}, v{t2}, v{t1}\nv_xor_b32 v{t0}, v{t0}, v{t3}")
    s(f"v_lshl_add_u32 v{t2}, v{t2}, 2, v{e_}\nv_lshlrev_b32 v{t2}, 7, v{t2}\nv_lshl_add_u32 v{t0}, v{t0}, 4, v{t2}\nv_lshrrev_b32 v{t2}, 1, v{q_}\nv_lshl_add_u32 v{lp}, v{t2}, 3, v{t0}")
    s(f"s_lshr_b32 s{sT1}, s{sW}, 1\ns_lshl_b32 s{sT2}, s{sT1}, 6\ns_lshl_b32 s{sT1}, s{sT1}, 11\nv_xor_b32 v{vT2}, s{sT2}, v{lp}\nv_add_u32 v{vT2}, s{sT1}, v{vT2}\nv_xor_b32 v{vT2+1}, 64, v{vT2}")
    for k in (1, 2): s(f"v_add_u32 v{vT2+2*k}, {61440*k}, v{vT2}\nv_add_u32 v{vT2+2*k+1}, {61440*k}, v{vT2+1}")
    s(f"v_mov_b32 v{v3}, v{lp}\nv_xor_b32 v{v3+1}, 64, v{lp}\nv_add_u32 v{v3+2}, {R}, v{v3}\nv_add_u32 v{v3+3}, {R}, v{v3+1}")
    s(f"s_and_b32 s{sT1}, s{sW}, 1\ns_lshl_b32 s{sT1}, s{sT1}, 6\ns_lshr_b32 s{sT2}, s{sW}, 1\ns_mul_i32 s{sT2}, s{sT2}, {R}\nv_xor_b32 v{v3+4}, s{sT1}, v{lp}\nv_add_u32 v{v3+4}, s{sT2}, v{v3+4}")
    s(f"s_lshl_b32 s{sT1}, s{sW}, 12\ns_add_u32 s{sT1}, s{sT1}, 65536\nv_lshl_add_u32 v{vRD}, v{vL}, 4, s{sT1}\nv_xor_b32 v{vRD+1}, 8192, v{vRD}")
    n_s2a = len(S)
    s(f"v_lshlrev_b32 v{vTRW}, 4, v{g_}\nv_add_u32 v{vTRW}, {TBL}, v{vTRW}")
    act_store_addr(vGAo, 0, True, False, WS_O); s(f"v_add_u32 v{vGAo+1}, 32768, v{vGAo}")
    s(f"v_and_b32 v{t0}, 1, v{g_}\nv_lshlrev_b32 v{t0}, 6, v{t0}\nv_lshl_add_u32 v{t0}, v{c_}, 5, v{t0}\nv_lshrrev_b32 v{t2}, 1, v{g_}\nv_lshl_add_u32 v{t0}, v{t2}, 4, v{t0}")
    s(f"s_lshl_b32 s{sT1}, s{sW}, 7\ns_add_u32 s{sT1}, s{sT1}, {CS3}\nv_add_u32 v{vCW}, s{sT1}, v{t0}")
    s(f"v_xor_b32 v{t0}, v{c_}, v{g_}\nv_and_b32 v{t0}, 1, v{t0}\nv_add_u32 v{t0}, -1, v{t0}")
    for i in range(4): s(f"v_and_b32 v{vSEL+i}, v{vONE}, v{t0}")
    n_s2q = len(S)
    s(f"v_lshlrev_b32 v{t1}, 2, v{g_}\nv_sub_u32 v{t0}, v{c_}, v{t1}")
    S.append(("blk", f"s_cmp_eq_u32 s{sRQ}, 0\ns_cselect_b32 s{sT3}, {fl(-1e30)}, 0"))
    s(f"v_sub_u32 v{lp}, 1, v{g_}\nv_ashrrev_i32 v{lp}, 31, v{lp}")
    NEG = fl(-1e30)
    for r in range(4):
        s(f"v_subrev_u32 v{t1}, {r}, v{t0}")
        s(f"v_sub_u32 v{t2}, 7, v{t1}\nv_or_b32 v{t2}, v{t2}, v{t1}\nv_ashrrev_i32 v{t2}, 31, v{t2}\nv_and_b32 v{vBI+r}, {NEG}, v{t2}")
        s(f"v_sub_u32 v{t2}, -9, v{t1}\nv_ashrrev_i32 v{t2}, 31, v{t2}\nv_and_b32 v{vBI+4+r}, {NEG}, v{t2}\nv_or_b32 v{vBI+12+r}, s{sT3}, v{vBI+4+r}")
        s(f"v_not_b32 v{t2}, v{t1}\nv_ashrrev_i32 v{t2}, 31, v{t2}\nv_or_b32 v{t2}, v{t2}, v{lp}\nv_and_b32 v{t2}, {NEG}, v{t2}\nv_or_b32 v{vBI+8+r}, s{sT3}, v{t2}")
    s(f"s_mov_b32 s{sT1}, 0x07060302")
    for t in range(4):
        for k in range(2):
            s(f"v_ashrrev_i32 v{t0}, 31, v{vBI+4*t+2*k}\nv_ashrrev_i32 v{t1}, 31, v{vBI+4*t+2*k+1}\nv_perm_b32 v{t0}, v{t1}, v{t0}, s{sT1}\nv_not_b32 v{vAM+2*t+k}, v{t0}")
    S2 = S
    def Sitems(L):
        it = []
        for x in L:
            if isinstance(x, tuple) and x[0] == "ds": it += g.Ids(x[1])
            elif isinstance(x, tuple): it.append((lambda x=x: g(x[1]), len(x[1].split("\n"))))
            else: it += g.I(x)
        return it
    def atomize(L):
        out = []
        for x in L:
            if out and isinstance(x, str) and x.startswith("s_cselect") and isinstance(out[-1], str): out[-1] = ("blk", out[-1] + "\n" + x)
            else: out.append(x)
        return out
    NP2 = opt.get("npre2", 2)
    dm = cat(p1a_dma(i) for i in range(NPRE, NP2))
    S2q, S2p = S2[:n_s2q], S2[n_s2q:]
    nq = min(len(S2q), opt.get("s2early", 1000))
    early = S2q[:nq]; S2q = S2q[nq:]
    if opt.get("maskearly", 1): assert not S2q; early += S2p; S2p = []
    SM = [f for f, c in Sitems(atomize(S1) + early)]
    w0 = int(len(SM) * opt.get("w0", 0.7))
    g.weave(SM[:w0], []); g.weave_t(SM[w0:], vm=dm, period=60)
    g.ts("setup done")
    if HL: halo()

    def tr16(dst, ldsoff, tag):
        o = ldsoff - R
        reg, o = (vTR16a, o) if o < 36864 else (vTR16b, o - 36864)
        return cat(g.Ids(f"ds_read_b64_tr_b16 {ar(dst+2*e,2)}, v{reg} offset:{o+512*e}", tag) for e in range(2))
    def stats_calc(gr, sm, tmp, a2=True):
        q0, mean, var, rstd = tmp, tmp + 1, tmp + 2, tmp + 3
        L = (f"v_cndmask_b32 v{q0}, v{gr}, v{gr+1}, s[{sM1}:{sM1+1}]\nv_cndmask_b32 v{q0}, v{q0}, v{gr+2}, s[{sM2}:{sM2+1}]\nv_cndmask_b32 v{q0}, v{q0}, v{gr+3}, s[{sM3}:{sM3+1}]\n"
          f"v_mul_f32 v{mean}, {fl(1/512)}, v{sm}\nv_mul_f32 v{q0}, {fl(1/512)}, v{q0}\nv_fma_f32 v{var}, -v{mean}, v{mean}, v{q0}\nv_max_f32 v{var}, 0, v{var}\n"
          f"v_add_f32 v{rstd}, {fl(EPS)}, v{var}\nv_rsq_f32 v{rstd}, v{rstd}").split("\n")
        if a2: L += f"v_mul_f32 v{var}, v{var}, v{rstd}\nv_mul_f32 v{var}, v{var}, v{rstd}\nv_add_f32 v{var}, {fl(EPS)}, v{var}\nv_rsq_f32 v{var}, v{var}\nv_mul_f32 v{var}, v{var}, v{rstd}".split("\n")
        return L
    def bcast_g0(dst, src, tmp):
        return [f"v_mov_b32 v{dst}, v{src}", f"v_mov_b32 v{tmp}, v{src}", f"v_permlane16_swap_b32 v{dst}, v{tmp}", f"v_mov_b32 v{tmp}, v{dst}", f"v_permlane32_swap_b32 v{dst}, v{tmp}"]

    hA = V(16); csA = V(4); grA = V(4); smA = V(4); grH = V(4)
    QSLOT = lambda j: R + 12288 * (j % 6)
    def qkv_dma(j):
        return cat(g.Idma(sWQKV, vW3072, (sQK + (j >> 1), (j & 1) * 32 * 3072 + s_ * 1024), QSLOT(j) + s_ * 4096, f"q{j}") for s_ in range(3))
    W2L = lambda u: R + (49152 + 4096 * u) % 73728
    def p1a_reads(i):
        it = []
        for ks in (2 * i, 2 * i + 1): it += tr16((ks & 3) * 24, W1L(i) + (ks & 1) * 4096, f"r{2*i}")
        for ks in (2 * i, 2 * i + 1):
            fb = (ks & 3) * 24
            it += g.Ids(f"ds_read_b128 {ar(fb+4,4)}, v{vXp+(ks&1)} offset:{i*2048}", f"r{ks}")
            it += g.Ids(f"ds_read_b128 {ar(fb+20,4)}, v{vXh0+(ks&1)} offset:{i*2048}", f"r{ks}")
            for b in range(1, 4): it += g.Ids(f"ds_read_b128 {ar(fb+4+4*b,4)}, v{vXp+2*b+(ks&1)} offset:{i*2048}", f"r{ks}")
        return it
    def p1a_mfma(ks):
        fb = (ks & 3) * 24; z = "0" if ks == 0 else None
        L = [lambda: (g.wait(lg=f"r{ks}"), MF16(g, vr(grA, 4), ar(fb + 4, 4), ar(fb + 4, 4), z))]
        L.append(lambda: MF16(g, vr(smA, 4), vr(vONE, 4), ar(fb + 4, 4), z))
        L.append(lambda: MF16(g, vr(grH, 4), ar(fb + 20, 4), ar(fb + 20, 4), z))
        L.append(lambda: MF16(g, vr(csA, 4), ar(fb, 4), vr(vONE, 4), z))
        for b in range(4): L.append(lambda b=b: MF16(g, vr(hA + 4 * b, 4), ar(fb, 4), ar(fb + 4 + 4 * b, 4), z))
        return L
    free_after = {1: [0], 2: [1], 4: [2], 5: [3], 7: [4]}
    dq = []; qq = []
    PP1 = opt.get("pp1", 64)
    for i in range(8):
        g.wait(vm=f"c{i}", lg="all" if i == 0 else f"r{2*i-2}")
        g("s_barrier")
        if i in (0, 3): g.ts(f"c{i} landed")
        if i == NPRE:
            g(f"s_or_b32 s{sT1}, s2, s{sW}\ns_cbranch_scc0 Lr")
            g.label("Lnr")
            g.tail.append(f"Lr:\ns_mov_b64 exec, 1\nbuffer_store_dword v{vPA+1}, v{vPA}, s[{sDBG}:{sDBG+3}], 0 offen sc1\ns_mov_b64 exec, -1\ns_branch Lnr")
        if i == 7: g.ts("c7 landed")
        for j in free_after.get(i, []): qq += qkv_dma(j)
        if NP2 + i < 8: dq = p1a_dma(NP2 + i)
        else: dq = dq + qq; qq = []
        rd = p1a_reads(i)
        if i == 0: g.run(rd + dq); dq = []
        else:
            r_ = g.weave_t(p1a_mfma(2 * i - 2) + p1a_mfma(2 * i - 1), [(rd, 1.0)], dq, PP1, flush=False)
            g.run(r_[0]); dq = r_[1]
            if NP2 + i < 8: g.run(dq); dq = []
    dq = g.weave_t(p1a_mfma(14) + p1a_mfma(15), [], dq + qq, PP1, stop=160, flush=False)[0]
    g.ts("p1a mfma done")
    ta = V(4); tb = V(4); smH = V(2)
    for x in stats_calc(grA, smA, ta): g(x)
    g(f"s_mov_b64 exec, s[{sMD}:{sMD+1}]")
    g.ds(f"ds_write_b32 v{vTP}, v{ta+1} offset:{T_MEAN}"); g.ds(f"ds_write_b32 v{vTP}, v{ta+2} offset:{T_A2}"); g.ds(f"ds_write_b32 v{vTP}, v{ta+3} offset:{T_RSTD}")
    g("s_mov_b64 exec, -1")
    for x in bcast_g0(smH, grH, smH + 1): g(x)
    g.wait(lg="all"); g("s_barrier")
    g.ts("f:stats bar")
    vST = V(8); gt = V(16)
    for i in range(4): g.ds(f"ds_read2_b32 {vr(vST+2*i,2)}, v{vTP+i} offset0:{T_MEAN//4} offset1:{T_A2//4}", f"s{i}")
    g.ds(f"ds_read_b128 {vr(vXT,4)}, v{vXTa}"); g.ds(f"ds_read_b128 {vr(vXT+4,4)}, v{vXTa+1}")
    g.ds(f"ds_read2_b32 {vr(vXS,2)}, v{vXSa} offset0:{T_MEAN//4} offset1:{T_RSTD//4}")
    for x in stats_calc(grH, smH, tb, a2=False): g(x)
    g(f"s_mov_b64 exec, s[{sMD}:{sMD+1}]")
    g.ds(f"ds_write_b32 v{vTC}, v{tb+1} offset:{T_MEAN+256}"); g.ds(f"ds_write_b32 v{vTC}, v{tb+3} offset:{T_RSTD+256}")
    g("s_mov_b64 exec, -1")
    Q5LATE = 1
    dm = dq + poll_issue(g, vPA, "rdy", sDBG)
    g.wait(lg="s3")
    L = []
    for i in range(4): L += norm_pk(hA + 4 * i, csA, vST + 2 * i, 4)
    L += gelu_pk([hA + 2 * k for k in range(8)], gt)
    pk = gt
    for k in range(8): L.append(f"v_cvt_pk_bf16_f32 v{pk+k}, v{hA+2*k}, v{hA+2*k+1}")
    for P in range(2): L += [f"v_permlane16_swap_b32 v{pk+4*P}, v{pk+4*P+2}", f"v_permlane16_swap_b32 v{pk+4*P+1}, v{pk+4*P+3}"]
    for P in range(2):
        for k in range(4): L.append(f"v_cndmask_b32 v{pk+4*P+k}, 0, v{pk+4*P+k}, s[{sMZ+2*P}:{sMZ+2*P+1}]")
    def touch2():
        if opt.get("touch2", 1):
            g(f"s_lshl_b32 s{sT3}, s2, 2\ns_add_u32 s{sT3}, s{sT3}, s{sW}\ns_mul_i32 s{sT2}, s{sT3}, {14*128}\ns_lshl_b32 s{sT3}, s{sT3}, 9\ns_bfm_b64 exec, 14, 0")
            for srd in (sW3, sW4): g.vmem(f"buffer_load_dword v{vDUM}, v{vL128}, s[{srd}:{srd+3}], s{sT2} offen", "touch")
            g("s_mov_b64 exec, 15")
            for srd in (sW2, sWO): g.vmem(f"buffer_load_dword v{vDUM}, v{vL128}, s[{srd}:{srd+3}], s{sT3} offen", "touch")
            g("s_mov_b64 exec, -1")
    g.weave_t(valu_main(g, L), vm=dm, period=opt.get("pe1", 76))
    for P in range(2): g.vmem(f"buffer_store_dwordx4 {vr(pk+4*P,4)}, v{vGAh+P}, s[{sWS}:{sWS+3}], 0 offen sc1", "stG")
    g.ts("f:h st issued")
    if Q5LATE: g.run(qkv_dma(5))
    if opt.get("t2pos", 2) == 1: touch2()
    g(f"s_bfe_u32 s{sTAU}, s2, 0x30003\ns_lshr_b32 s{sT1}, s2, 6\ns_lshl_b32 s{sT1}, s{sT1}, 3\ns_and_b32 s{sT2}, s2, 7\ns_add_u32 s{sT1}, s{sT1}, s{sT2}")
    g(f"s_and_b32 s{sT2}, s{sTAU}, 3\ns_lshl_b32 s{sT2}, s{sT2}, 5\ns_add_u32 s{sT1}, s{sT1}, s{sT2}\ns_lshl_b32 s{sT1}, s{sT1}, 2\ns_add_u32 s{sT1}, s{sT1}, s{sW}\ns_mul_i32 s{sTO2}, s{sT1}, {28*128}\ns_lshl_b32 s{sTO1}, s{sT1}, 10")
    def touch2s(k):
        lab = g.newlabel("Lt2"); back = g.newlabel("Lt2b")
        a_, b_ = (sW2, sW3) if k < 4 else (sWO, sW4)
        if opt.get("w4late", 0):
            a_ = sW2 if k < 4 else sWO
            g.tail.append(f"{lab}:\ns_bfm_b64 exec, 8, 0\nbuffer_load_dword v{vDUM}, v{vL128}, s[{a_}:{a_+3}], s{sTO1} offen\ns_bfm_b64 exec, 14, 0\nbuffer_load_dword v{vDUM}, v{vL128}, s[{sW3}:{sW3+3}], s{sTO2} offen offset:{(k//4)*14*128}\ns_mov_b64 exec, -1\ns_branch {back}")
            return [(lambda: g(f"s_cmp_eq_u32 s{sTAU}, {k}\ns_cbranch_scc1 {lab}\n{back}:"), 2)]
        g.tail.append(f"{lab}:\ns_bfm_b64 exec, 8, 0\nbuffer_load_dword v{vDUM}, v{vL128}, s[{a_}:{a_+3}], s{sTO1} offen\ns_bfm_b64 exec, 28, 0\nbuffer_load_dword v{vDUM}, v{vL128}, s[{b_}:{b_+3}], s{sTO2} offen\ns_mov_b64 exec, -1\ns_branch {back}")
        return [(lambda: g(f"s_cmp_eq_u32 s{sTAU}, {k}\ns_cbranch_scc1 {lab}\n{back}:"), 2)]
    g.ts("h stored")
    V.reset(KEEP)
    g.forget()
    qA = V(16); kA = V(20); vA = V(20); cq = V(4)
    QEND = V.mark()
    WF = lambda j: 64 + (j & 1) * 12
    XF = lambda j: 88 + (j % 3) * 20
    def qkv_rw(j): return cat(tr16(WF(j) + 4 * s_, QSLOT(j) + s_ * 4096, f"r{j}") for s_ in range(3))
    def qkv_rx(j):
        itx = []
        for b in range(4): itx += g.Ids(f"ds_read_b128 {ar(XF(j)+4*b,4)}, v{vXr0+(j&1)} offset:{b*16384+(j>>1)*2048}", f"x{j}")
        return itx + g.Ids(f"ds_read_b128 {ar(XF(j)+16,4)}, v{vXh0+(j&1)} offset:{(j>>1)*2048}", f"x{j}")
    def qkv_mfma(j):
        fb = WF(j); z = "0" if j == 0 else None
        X = lambda b: ar(XF(j) + 4 * b, 4)
        L = []
        for b in range(4): L.append(lambda b=b: MF16(g, vr(qA + 4 * b, 4), ar(fb, 4), X(b), z))
        for b in range(5): L.append(lambda b=b: MF16(g, vr(kA + 4 * b, 4), ar(fb + 4, 4), X(b), z))
        for b in range(5): L.append(lambda b=b: MF16(g, vr(vA + 4 * b, 4), X(b), ar(fb + 8, 4), z))
        L.append(lambda: MF16(g, vr(cq, 4), ar(fb, 4), vr(vONE, 4), z))
        return L
    def act_load(dst, voff, stab, odd, tag):
        it = [] if odd else g.I(f"s_lshr_b32 s{sA0}, s{stab}, 4")
        return it + g.Ivm(f"buffer_load_dwordx4 {ar(dst,4)}, v{voff}, s[{sWS}:{sWS+3}], s{sA0} offen offset:{odd*2048} sc1", tag)
    w512 = lambda srd, u, lds, tag: g.Idma(srd, vW1024, (sW1Ks + (u >> 1), (u & 1) * 32768), lds, tag)
    JPUB = opt.get("jpub", 4); JPOLL = opt.get("jpoll", 9); JCHK = opt.get("jchk", 11)
    gl = 0
    NOROT = opt.get("norot", 3)
    if NOROT & 1: s2 = Sitems(S2q + [f"s_mov_b32 s{sXK+i}, {i*128*1792}" for i in range(8)] + [f"s_mov_b32 s{sW1Ks+i}, {i<<16}" for i in range(8)])
    else: s2 = Sitems(S2q + [f"s_mul_i32 s{sXK+i}, s{sXK+i}, 1792" for i in range(8)])
    g.run(qkv_rx(0))
    gsched = [int(c) for c in str(opt.get("gs", "00000000000220224")).rjust(17, "0")]
    for j in range(17):
        g.wait(vm=([f"q{j}"] if j < 16 else []) + (["stG"] if j == JPUB else []), lg=f"r{j-1}" if j else None)
        if j == JPUB: poll_check(g, 1, "rdy", srd=sDBG)
        if j == JCHK: poll_check(g, 8, "pollH")
        g("s_barrier")
        if j == JPUB: signal(g, vPLH); g.ts("h published")
        if j == JCHK: g.ts("h visible")
        if j in (1, 5, 7, 9, 14): g.ts(f"f:qkv j{j}")
        rd = (qkv_rw(j) if j < 16 else []) + (qkv_rx(j + 1) if j < 15 else [])
        dm = []
        if j == JPOLL: dm += poll_issue(g, vPLH, "pollH")
        if j >= 1:
            nxt = j + 5
            if nxt < 16: dm += qkv_dma(nxt)
            else:
                for u in range(3 * (nxt - 16), min(16, 3 * (nxt - 16) + 3)): dm += w512(sW2, u, W2L(u), f"w2_{u}")
        if opt.get("t2pos", 2) == 2:
            for k in range(8):
                if opt.get("t2j", 0) + int(k * opt.get("t2s", 1)) == j: dm += touch2s(k)
        if j >= JCHK:
            k = gsched[j]
            for t in range(gl, min(16, gl + k)): dm += act_load(4 * t, vAG, sW1Ks + (t >> 1), t & 1, f"g{t}")
            gl = min(16, gl + k)
        if j == 0: g.run(rd + dm + s2[:16]); s2 = s2[16:]
        else:
            nv = sum(getattr(f, "vm", 0) for f, c in dm)
            r_ = g.weave_t(qkv_mfma(j - 1), [(rd, 0.8), (s2, opt.get("rs2", 0.6))], dm, min(72, 215.0 / max(nv, 1)), flush=False)
            g.run(r_[0] + r_[2]); s2 = r_[1]
    g.run(s2); print("S2q flushed after QKV:", len(s2)); s2 = Sitems(S2p)
    g.ts("qkv mfma done")
    print("S2 left after QKV:", len(s2))
    g.forget()
    aWF = 128
    def t2_reads(ldsoff, slot, tag):
        k = ldsoff // 61440; o = ldsoff - 61440 * k
        return cat(g.Ids(f"ds_read_b64_tr_b16 {ar(aWF+8*slot+4*f+2*e,2)}, v{vT2+2*k+f} offset:{o+512*e}", tag) for f in range(2) for e in range(2))
    def t2_mfma(slot, act, wtag, atag, z0=None, z1=None):
        return [lambda: (g.wait(vm=atag, lg=wtag), MF32(g, vr(vAC1, 16), ar(aWF + 8 * slot + 4, 4), act, z1)),
                lambda: MF32(g, vr(vRES, 16), ar(aWF + 8 * slot, 4), act, z0)]
    gr = cat(act_load(4 * t, vAG, sW1Ks + (t >> 1), t & 1, f"g{t}") for t in range(gl, 16))
    U1 = opt.get("u1", 9)
    g.wait(vm=f"w2_{U1-1}"); g("s_barrier")
    g.ts("f:w2 landed")
    w3 = lambda u, hf, lds: g.Idma(sW3, vW3584, (sXK + (u >> 1), (u & 1) * 32 * 3584 + 128 * hf), lds, f"w3{hf}")
    code_touch = g.I(f"v_lshlrev_b32 v{vPV}, 7, v0") + g.Ivm(f"buffer_load_dword v{vDUM}, v{vPV}, s[{sCODE}:{sCODE+3}], s{sCT} offen", "touch")
    w3a = cat(w3(u, 0, u * 4096) for u in range(16))
    if opt.get("ct2", 1): w3a = code_touch + w3a
    w3b = cat(w3(u, 1, R + u * 4096) for u in range(16))
    vRB = V(16); pk = V(8); s1 = V(2); s2_ = V(2); xf = V(16)
    tab = [("blk", f"s_lshl_b32 s{sT1}, s{sROT}, 1\ns_cmp_ge_u32 s{sT1}, 14\ns_cselect_b32 s{sT1}, 1, s{sT1}\ns_lshl_b32 s{sW4T[0]}, s{sT1}, 17")]
    for u in range(1, 14): tab.append(("blk", f"s_add_u32 s{sT1}, s{sW4T[u-1]}, {1<<17}\ns_cmp_eq_u32 s{sT1}, {14<<17}\ns_cselect_b32 s{sW4T[u]}, 0, s{sT1}"))
    if NOROT & 2: tab = [f"s_mov_b32 s{sW4T[u]}, {u<<17}" for u in range(14)]
    pre = []
    for k in range(8): pre += [f"v_lshlrev_b32 v{xf+2*k}, 16, v{vXT+k}", f"v_and_b32 v{xf+2*k+1}, 0xffff0000, v{vXT+k}"]
    g.run(t2_reads(W2L(0), 0, "w0") + t2_reads(W2L(1), 1, "w1"))
    main = []; rd = []
    for t in range(16):
        main += t2_mfma(t % 4, ar(4 * t, 4), f"w{t}", f"g{t}", *(("0", "0") if t == 0 else ()))
        if t + 2 < 16: rd += t2_reads(W2L(t + 2), (t + 2) % 4, f"w{t+2}")
    n1 = 2 * (U1 - 2)
    PP2 = opt.get("pp2", 72)
    r_ = g.weave_t(main[:n1], [(rd, 2.0), (Sitems(pre) + s2 + Sitems(tab), opt.get('rsp', 2.5))], gr + w3a, PP2, flush=False)
    g.wait(vm="w2_15"); g("s_barrier")
    r_ = g.weave_t(main[n1:], [(r_[0], 2.0), (r_[1], opt.get('rsp', 2.5))], r_[2], PP2, stop=(32 - n1) * 32 - opt.get("p2stop", 0), flush=False)
    w3b = r_[2] + w3b; s2 = r_[1]
    print("after P2: S left", len(s2), "w3 items left", len(w3b))
    g.ts("p2 mfma done")
    def reduce_send():
        for q in range(4): g.ds(f"ds_write_b128 v{vRD}, {vr(vAC1+4*q,4)} offset:{q*1024}")
    def reduce_recv():
        g.wait(lg="all"); g("s_barrier")
        for q in range(4): g.ds(f"ds_read_b128 {vr(vRB+4*q,4)}, v{vRD+1} offset:{q*1024}", f"rb{q}")
    g.ts("f:p2 flushed")
    reduce_send()
    for k in range(0, 16, 2):
        g(f"v_pk_add_f32 {vr(vRB+k,2)}, {vr(xf+k,2)}, {vr(vXS,2)} op_sel:[0,0] op_sel_hi:[1,0] neg_lo:[0,1] neg_hi:[0,1]")
    g.ts("f:red sent")
    for k in range(0, 16, 2):
        g(f"v_pk_fma_f32 {vr(vRES+k,2)}, {vr(vRB+k,2)}, {vr(vXS,2)}, {vr(vRES+k,2)} op_sel:[0,1,0] op_sel_hi:[1,1,1]")
    reduce_recv()
    g.ts("f:red recvd")
    for k in range(0, 16, 2):
        if k % 4 == 0: g.wait(lg=f"rb{k//4}")
        g(f"v_pk_add_f32 {vr(vAC1+k,2)}, {vr(vRES+k,2)}, {vr(vRB+k,2)}")
        g(f"v_cvt_pk_bf16_f32 v{pk+k//2}, v{vAC1+k}, v{vAC1+k+1}")
        if k % 8 == 6: g.vmem(f"buffer_store_dwordx4 {vr(pk+4*(k//8),4)}, v{vSX}, s[{sWS}:{sWS+3}], 0 offen offset:{512*(k//8)} sc1", "stX")
    g(f"v_pk_add_f32 {vr(s1,2)}, {vr(vAC1,2)}, {vr(vAC1+2,2)}\nv_pk_mul_f32 {vr(s2_,2)}, {vr(vAC1,2)}, {vr(vAC1,2)}")
    for k in range(2, 16, 2):
        if k > 2: g(f"v_pk_add_f32 {vr(s1,2)}, {vr(s1,2)}, {vr(vAC1+k,2)}")
        g(f"v_pk_fma_f32 {vr(s2_,2)}, {vr(vAC1+k,2)}, {vr(vAC1+k,2)}, {vr(s2_,2)}")
    g(f"v_add_f32 v{s1}, v{s1}, v{s1+1}\nv_add_f32 v{s2_}, v{s2_}, v{s2_+1}")
    g(f"v_pk_add_f32 {vr(vRES,2)}, {vr(vAC1,2)}, {vr(xf,2)}\nv_pk_add_f32 {vr(vRES+2,2)}, {vr(vAC1+2,2)}, {vr(xf+2,2)}")
    g(f"v_permlane32_swap_b32 v{s1}, v{s2_}\nv_add_f32 v{s1}, v{s1}, v{s2_}")
    g.vmem(f"buffer_store_dword v{s1}, v{vSS}, s[{sWS}:{sWS+3}], 0 offen sc1", "stX")
    g.ts("x1 stored")
    for k in range(4, 16, 2): g(f"v_pk_add_f32 {vr(vRES+k,2)}, {vr(vAC1+k,2)}, {vr(xf+k,2)}")
    V.reset(QEND)
    vSRm = V(20); vSRr = V(20); vSC = V(10)
    ck = (PERSIST + 1) // 2 * 2; cv = ck + 4; assert cv + 2 <= KEEP
    for b in range(5): g.ds(f"ds_read2_b32 {vr(vSC+2*b,2)}, v{vTC} offset0:{T_MEAN//4+16*b} offset1:{T_RSTD//4+16*b}", "sc")
    for b in range(5):
        g.ds(f"ds_read_b128 {vr(vSRm+4*b,4)}, v{vTRW} offset:{T_MEAN+64*b}", "sr"); g.ds(f"ds_read_b128 {vr(vSRr+4*b,4)}, v{vTRW} offset:{T_RSTD+64*b}", "sr")
    A = [f for f, c in s2]
    def a(s_):
        for l in s_.split("\n"): A.append(lambda l=l: g(l))
    for r in range(4): a(f"v_mov_b32_dpp v{ck+r}, v{kA+16+r} row_newbcast:0 row_mask:0xf bank_mask:0xf")
    a("\n".join(bcast_g0(cv, vA + 16, cv + 1)))
    A.append(lambda: g.wait(lg="sc"))
    for b in range(5): a("\n".join(norm_pk(kA + 4 * b, ck, vSC + 2 * b, 4)))
    for b in range(4): a(f"v_mul_f32 v{vSC+2*b+1}, {fl(QSCALE)}, v{vSC+2*b+1}")
    for b in range(4): a("\n".join(norm_pk(qA + 4 * b, cq, vSC + 2 * b, 4)))
    qP = vAC1; kP = vSC
    for b in range(4):
        for k in range(2): a(f"v_cvt_pk_bf16_f32 v{qP+2*b+k}, v{qA+4*b+2*k}, v{qA+4*b+2*k+1}")
    for b in range(5):
        for k in range(2): a(f"v_cvt_pk_bf16_f32 v{kP+2*b+k}, v{kA+4*b+2*k}, v{kA+4*b+2*k+1}")
    A.append(lambda: g.wait(lg="sr"))
    for b in range(5):
        for k in (0, 2): a(f"v_pk_fma_f32 {vr(vA+4*b+k,2)}, {vr(vSRm+4*b+k,2)}, {vr(cv,2)}, {vr(vA+4*b+k,2)} op_sel_hi:[1,0,1] neg_lo:[1,0,0] neg_hi:[1,0,0]")
    for b in range(5):
        for k in (0, 2): a(f"v_pk_mul_f32 {vr(vA+4*b+k,2)}, {vr(vA+4*b+k,2)}, {vr(vSRr+4*b+k,2)}")
    iPUB = len(A)
    Sc = qA; Sp = kA; vP = vSRm
    vc = [f"v_cvt_pk_bf16_f32 v{vP+6*p+2*n+k}, v{vA+4*b+2*k}, v{vA+4*b+2*k+1}" for p in range(2) for n, b in enumerate((4, p, 2 + p)) for k in range(2)]
    for b in range(4):
        tg, p = b >> 1, b & 1
        pb = 4 if tg == 0 else p
        pbias = (vBI + 8 + 4 * p) if tg == 0 else vBI + 4
        a(f"v_mfma_f32_16x16x16_bf16 {vr(Sc+4*b,4)}, {vr(kP+2*b,2)}, {vr(qP+2*b,2)}, {vr(vBI,4)}\n{vc[3*b]}\n{vc[3*b+1]}")
        a(f"v_mfma_f32_16x16x16_bf16 {vr(Sp+4*b,4)}, {vr(kP+2*pb,2)}, {vr(qP+2*b,2)}, {vr(pbias,4)}\n{vc[3*b+2]}")
    PP = vSRr; Oa = vA; Dn = Sc; mx = Sp
    for b in range(4):
        for r in range(4): a(f"v_max_f32 v{Sc+4*b+r}, v{Sc+4*b+r}, v{Sp+4*b+r}")
    for b in range(4): a(f"v_max3_f32 v{mx+4*b+2}, v{Sc+4*b}, v{Sc+4*b+1}, v{Sc+4*b+2}")
    for b in range(4): a(f"v_max_f32 v{mx+4*b}, v{mx+4*b+2}, v{Sc+4*b+3}\nv_max_f32 v{mx+4*b+1}, v{mx+4*b+2}, v{Sc+4*b+3}")
    for b in range(4): a(f"v_permlane16_swap_b32 v{mx+4*b}, v{mx+4*b+1}")
    for b in range(4): a(f"v_max_f32 v{mx+4*b+2}, v{mx+4*b}, v{mx+4*b+1}\nv_max_f32 v{mx+4*b+3}, v{mx+4*b}, v{mx+4*b+1}")
    for b in range(4): a(f"v_permlane32_swap_b32 v{mx+4*b+2}, v{mx+4*b+3}")
    for b in range(4): a(f"v_max_f32 v{mx+4*b}, v{mx+4*b+2}, v{mx+4*b+3}")
    for b in range(4):
        for k in (0, 2): a(f"v_pk_add_f32 {vr(Sc+4*b+k,2)}, {vr(Sc+4*b+k,2)}, {vr(mx+4*b,2)} op_sel:[0,0] op_sel_hi:[1,0] neg_lo:[0,1] neg_hi:[0,1]")
    for b in range(4):
        for r in range(4): a(f"v_exp_f32 v{Sc+4*b+r}, v{Sc+4*b+r}")
    for b in range(4):
        for k in range(2): a(f"v_cvt_pk_bf16_f32 v{PP+4*b+2+k}, v{Sc+4*b+2*k}, v{Sc+4*b+2*k+1}")
    for b in range(4):
        tg, p = b >> 1, b & 1
        pm = (vAM + 4 + 2 * p) if tg == 0 else vAM + 2
        for k in range(2): a(f"v_and_b32 v{PP+4*b+k}, v{pm+k}, v{PP+4*b+2+k}")
        for k in range(2): a(f"v_and_b32 v{PP+4*b+2+k}, v{vAM+k}, v{PP+4*b+2+k}")
    for b in range(4): a(f"v_mfma_f32_16x16x32_bf16 {vr(Dn+4*b,4)}, {vr(vONE,4)}, {vr(PP+4*b,4)}, 0")
    for b in range(4):
        tg, p = b >> 1, b & 1
        a(f"v_mfma_f32_16x16x32_bf16 {vr(Oa+4*b,4)}, {vr(vP+6*p+2*tg,4)}, {vr(PP+4*b,4)}, 0")
    for b in range(4): a(f"v_rcp_f32 v{Dn+4*b}, v{Dn+4*b}")
    for b in range(4):
        for k in (0, 2): a(f"v_pk_mul_f32 {vr(Oa+4*b+k,2)}, {vr(Oa+4*b+k,2)}, {vr(Dn+4*b,2)} op_sel:[0,0] op_sel_hi:[1,0]")
    pk = vAC1 + 8
    for k in range(8): a(f"v_cvt_pk_bf16_f32 v{pk+k}, v{Oa+2*k}, v{Oa+2*k+1}")
    for P in range(2): a(f"v_permlane16_swap_b32 v{pk+4*P}, v{pk+4*P+2}\nv_permlane16_swap_b32 v{pk+4*P+1}, v{pk+4*P+3}")
    iPUB += opt.get("ipub", 0)
    if opt.get("w4late", 0) == 2: w3b = w3b + [(lambda: g.run(touch(sW4, 14)), 1)]
    PA = opt.get("pa", 72)
    rest = g.weave_t(A[:iPUB], vm=w3b, period=PA, flush=False)
    g.ts("f:attn1 done")
    g.wait(vm="stX"); g("s_barrier"); signal(g, vPLX)
    g.ts("x1 published")
    g.weave_t(A[iPUB:], vm=rest[0], period=PA)
    for P in range(2): g.vmem(f"buffer_store_dwordx4 {vr(pk+4*P,4)}, v{vGAo+P}, s[{sWS}:{sWS+3}], 0 offen sc1", "stO")
    g.ts("o stored")
    V.reset(vBI)
    base_slots = [65536 + 4096 * i for i in range(4)] + [R + 65536 + 4096 * i for i in range(2)] + [R + 4096 * i for i in range(16)] + [4096 * i for i in range(16)]
    W4L = lambda n: base_slots[n % 38]
    def w4_dma(n): return g.Idma(sW4, vW1024, (sW4T[(n % 28) >> 1], ((n // 28) * 2 + (n & 1)) * 32768), W4L(n), f"f{n}")
    wol = cat(w512(sWO, u, 4096 * u, "wo") for u in range(16))
    ol = cat(act_load(4 * t, vAO, sW1Ks + (t >> 1), t & 1, f"a{t}") for t in range(16))
    hslots = [224 + 4 * i for i in range(8)] + [64 + 4 * i for i in range(16)] + [160 + 4 * i for i in range(16)] + [4 * i for i in range(16)]
    hreg = lambda n: hslots[n]
    hl = lambda n: act_load(hreg(n), vAH + n // 28, sW4T[(n % 28) >> 1], n & 1, f"ha{n}")
    CS3FIRST = opt.get("cs3first", 1)
    g.wait(vm="w31")
    g("s_barrier")
    g.ts("w3 landed")
    g.forget()
    g(f"s_cmp_ge_u32 s{sU14}, 14\ns_cbranch_scc1 Lp3idle")
    vm_at_split = list(g.vm)
    aP = V(64); c4 = V(4); st = V(16); cs = V(16); gt = V(16); pk = V(8)
    aFR = 192
    def w3_read(n, areg, t, tag):
        return cat(g.Ids(f"ds_read_b64_tr_b16 {ar(aFR+4*(n%8)+2*e,2)}, v{areg} offset:{t*2048+512*e}", tag) for e in range(2))
    xl = []
    for t in range(32):
        if t % 4 == 0: xl += g.I(f"s_lshr_b32 s{sA0}, s{sW1Ks + t//4}, 4")
        xl += g.Ivm(f"buffer_load_dwordx4 {ar(64+4*t,4)}, v{vAX}, s[{sWS}:{sWS+3}], s{sA0} offen offset:{(t%4)*1024} sc1", f"x{t}")
    for f in range(16): xl += g.Ivm(f"buffer_load_dword v{st+f}, v{vSTL}, s[{sWS}:{sWS+3}], 0 offen offset:{f*256} sc1", "st", 0.4)
    D = 6
    def cs3(fill):
        g.run(cat(w3_read(t, v3 + 4, t, f"s{t}") for t in range(D)))
        main = [(lambda u=u: (g.wait(lg=f"s{u|1}" if u % 2 == 0 else None), MF16(g, vr(c4, 4), ar(aFR + 4 * (u % 8), 4), vr(vSEL, 4), "0" if u == 0 else None))) for u in range(32)]
        rd = cat(w3_read(t, v3 + 4, t, f"s{t}") for t in range(D, 32))
        return g.weave_t(main, [(rd, 2.0)], fill, 56, flush=False)[1]
    NX = opt.get("nx", 15)
    NW0 = opt.get("nw0", 3)
    if opt.get("l2t", 0):
        g(f"s_lshr_b32 s{sT1}, s2, 3\ns_lshl_b32 s{sT1}, s{sT1}, 2\ns_add_u32 s{sT1}, s{sT1}, s{sW}\ns_and_b32 s{sT3}, s2, 1\ns_lshl_b32 s{sT3}, s{sT3}, 9")
        g(f"s_mul_i32 s{sT2}, s{sT1}, {14*1024}\ns_add_u32 s{sT2}, s{sT2}, s{sT3}\ns_lshl_b32 s{sT1}, s{sT1}, 12\ns_add_u32 s{sT1}, s{sT1}, s{sT3}")
        g(f"v_lshrrev_b32 v{vSG}, 2, v{vL}\nv_lshlrev_b32 v{vSG}, 10, v{vSG}\nv_and_b32 v{vPG}, 3, v{vL}\nv_lshl_add_u32 v{vSG}, v{vPG}, 7, v{vSG}\ns_bfm_b64 exec, 16, 0")
        g.vmem(f"buffer_load_dword v{vDUM}, v{vSG}, s[{sWO}:{sWO+3}], s{sT1} offen", "touch")
        g("s_bfm_b64 exec, 56, 0")
        g.vmem(f"buffer_load_dword v{vDUM}, v{vSG}, s[{sW4}:{sW4+3}], s{sT2} offen", "touch")
        g("s_mov_b64 exec, -1")
    g.run(cs3(cat(w4_dma(u) for u in range(NW0)) + poll_issue(g, vPLX, "pollX")))
    g(f"s_mov_b32 exec_lo, 0x00030003\ns_mov_b32 exec_hi, 0x00030003")
    g.ds(f"ds_write_b128 v{vCW}, {vr(c4,4)}")
    g("s_mov_b64 exec, -1")
    g.ts("f:cs3 calc")
    g.wait(vm="stO", lg="all")
    if CS3FIRST: poll_check(g, 16, "pollX")
    g("s_barrier")
    g.ts("f:x1 visible")
    if CS3FIRST: g.run(xl[:NX]); xl = xl[NX:]
    signal(g, vPLO)
    g.ts("cs3 done"); g.forget()
    seq = [(t, b) for t in range(32) for b in (0, 1)] + [(t, b) for t in range(32) for b in (2, 3)]
    def p3_main(u):
        t, b = seq[u]
        return lambda: (g.wait(vm=f"x{t}" if b == 0 else None, lg=f"s{u|1}" if u % 2 == 0 else None), MF32(g, vr(aP + 16 * b, 16), ar(aFR + 4 * (u % 8), 4), ar(64 + 4 * t, 4), "0" if t == 0 else None))
    def p3_rd(lo, hi): return cat(w3_read(n, v3 + seq[n][1], seq[n][0], f"s{n}") for n in range(lo, hi))
    D = 6
    g.run(p3_rd(0, D))
    W4E = opt.get("w4e", 1)
    if W4E: xl += cat(w4_dma(u) for u in range(NW0, 6))
    g.weave_t([p3_main(u) for u in range(64)], [(p3_rd(D, 64), 2.0)], xl, opt.get("px", 62))
    g.ts("p3 half")
    g("s_barrier")
    def csr(b): return [(lambda q=q: g.ds(f"ds_read_b128 {vr(cs+4*q,4)}, v{vCR} offset:{128*b+16*q}", "cs")) for q in range(4)]
    def epi(b0):
        E = []
        for b in (b0, b0 + 1):
            E.append(lambda: g.wait(lg="cs"))
            N = valu_main(g, norm_pk(aP + 16 * b, cs, st, 16))
            E += N[:8]
            if b < 3: E += csr(b + 1)
            E += N[8:]
            E += valu_main(g, gelu_pk([aP + 16 * b + 2 * k for k in range(8)], gt))
            for u in range(2):
                E += valu_main(g, [f"v_cvt_pk_bf16_f32 v{pk+k}, v{aP+16*b+2*k}, v{aP+16*b+2*k+1}" for k in range(4 * u, 4 * u + 4)])
                E.append(lambda b=b, u=u: g.vmem(f"buffer_store_dwordx4 {vr(pk+4*u,4)}, v{vSH+b//2}, s[{sWS}:{sWS+3}], 0 offen offset:{(b%2)*2048+512*u} sc1", f"stH{b//2}"))
        return E
    for f in csr(0): f()
    g.wait(vm="st")
    for k in range(2, 16, 2): g(f"v_pk_add_f32 {vr(st,2)}, {vr(st,2)}, {vr(st+k,2)}")
    g(f"v_add_f32 v{st}, v{st}, v{st+1}\nv_mul_f32 v{st}, {fl(1/512)}, v{st}\nv_mov_b32 v{st+1}, v{st}\nv_permlane32_swap_b32 v{st}, v{st+1}")
    g(f"v_fma_f32 v{st+1}, -v{st}, v{st}, v{st+1}\nv_max_f32 v{st+1}, 0, v{st+1}\nv_add_f32 v{st+1}, {fl(EPS)}, v{st+1}\nv_rsq_f32 v{st+1}, v{st+1}")
    g.ts("f:st ready")
    if opt.get("w4late", 0) == 1: g.run(touch(sW4, 14))
    E = epi(0)
    PE = opt.get("pe", 100)
    rest = g.weave_t(E, vm=poll_issue(g, vPLO, "pollO") + wol, period=PE, flush=False)[0]
    g.ts("h3a stored")
    g.run(p3_rd(64, 64 + D))
    poll_check(g, 8, "pollO"); g("s_barrier")
    NA = opt.get("na", 20)
    f1 = rest + ol + ([] if W4E else cat(w4_dma(u) for u in range(NW0, 6)))
    rd = p3_rd(64 + D, 128)
    r = g.weave_t([p3_main(u) for u in range(64, 64 + NA)], [(rd, 2.0)], f1, 76, flush=False)
    g.wait(vm="stH0"); g("s_barrier"); signal(g, vPLA)
    g.ts("h3a published")
    g.weave_t([p3_main(u) for u in range(64 + NA, 128)], [(r[0], 2.0)], r[1], 76)
    g.ts("p3 mfma done")
    g("s_barrier")
    NH0 = opt.get("nh0", 8)
    NW1 = opt.get("nw1", 18)
    f2l = [w4_dma(i) for i in range(6, NW1)]; f2starts = [x[0] for x in f2l]; f2 = cat(f2l)
    nfin = lambda L: [hasattr(f, "vm") for f, c in L].index(True) + 1
    E = epi(2)
    iPA = int(len(E) * opt.get("ipa", 0.5))
    rest2 = g.weave_t(E[:iPA], vm=f2, period=PE, flush=False)[0]
    rest2 = g.weave_t(E[iPA:], vm=poll_issue(g, vPLA, "pollA") + rest2 if not rest2 or rest2[0] in f2starts else rest2[:nfin(rest2)] + poll_issue(g, vPLA, "pollA") + rest2[nfin(rest2):], period=PE, flush=False)[0]
    g.ts("h3b stored")
    g.run(rest2)
    vm_active = list(g.vm)
    g.label("Lp3join")
    keep = g.lines; g.lines = []
    g.label("Lp3idle")
    g.vm = vm_at_split
    g.wait(vm="stO"); g("s_barrier"); signal(g, vPLO)
    if opt.get("w4late", 0) == 1: g.run(touch(sW4, 14))
    g.run(cat(w4_dma(u) for u in range(NW1)) + wol)
    g.run(poll_issue(g, vPLO, "pollO")); poll_check(g, 8, "pollO", sleep=16); g("s_barrier")
    g.run(ol)
    g.run(poll_issue(g, vPLA, "pollA")); poll_check(g, 14, "pollA", sleep=opt.get("isleep", 32))
    g.wait(vm="all")
    g("s_branch Lp3join")
    g.tail.append("\n".join(g.lines)); g.lines = keep
    g.vm = vm_active
    V.reset(PERSIST)
    g.forget()
    g(f"s_cmp_ge_u32 s{sU14}, 14\ns_cselect_b32 s{sSIGB}, 0x80000000, s{sSIG}")
    g.wait(vm="wo")
    MCA = opt.get("mca", 0)
    if MCA == 0: poll_check(g, 14, "pollA")
    g("s_barrier")
    if MCA == 0: g.ts("h3a visible")
    lds_of = lambda m: 4096 * m if m < 16 else W4L(m - 16)
    act_of = lambda m: ar(4 * m, 4) if m < 16 else ar(hreg(m - 16), 4)
    atag = lambda m: f"a{m}" if m < 16 else f"ha{m-16}"
    g.run(t2_reads(lds_of(0), 0, "w0") + t2_reads(lds_of(1), 1, "w1"))
    bounds = [0, 6, 14, 22, 30, 36, 42, 48, 54, 60, 66, 72]
    MPUB = opt.get("mpub", 6); MPOLL = opt.get("mpoll", 30); MCHK = opt.get("mchk", 36)
    LAH = opt.get("lah", 8); LAW = opt.get("law", 8); RATE = opt.get("rate", 0.88)
    nw = NW1; nh = 0; landed = -1; issued = 0
    for si, (lo, hi) in enumerate(zip(bounds[:-1], bounds[1:])):
        if lo > 0:
            need = min(55, hi + 1 - 16)
            tags = []
            if need > landed and need >= 0: tags.append(f"f{need}"); landed = need
            if lo == MPUB: tags.append("stH1")
            if tags: g.wait(vm=tags)
            if lo == MCA: poll_check(g, 14, "pollA")
            if lo == MCHK: poll_check(g, 14, "pollB")
            g("s_barrier")
            if lo == MCA: g.ts("h3a visible")
            if lo == MCHK: g.ts("h3b visible")
            if lo == MPUB: signal(g, vPLB, sSIGB); g.ts("h3b published")
        def dw(u):
            for a_, b_ in zip(bounds[:-1], bounds[1:]):
                if b_ + 1 - 16 >= u: return a_
            return bounds[-2]
        mer = []; cnt = 0
        while True:
            cw = nw < 56 and nw - 22 < lo
            ch = nh < (56 if lo >= MCHK else 28 if lo >= MCA else 0) and (nh < 40 or nh - 40 < lo - 1)
            if not (cw or ch): break
            tw = dw(nw) - LAW if cw else 1e9
            th = nh + 16 - LAH if ch else 1e9
            if min(tw, th) >= hi and issued + cnt >= RATE * hi: break
            if th <= tw: mer += hl(nh) + hl(nh + 1); nh += 2; cnt += 2
            else: mer += w4_dma(nw); nw += 1; cnt += 1
        issued += cnt
        if lo == MPOLL: mer = poll_issue(g, vPLB, "pollB") + mer
        if opt.get("verbose"): print("seg", lo, hi, "cnt", cnt, "nw", nw, "nh", nh)
        main = []; rd = []
        for m in range(lo, hi):
            main += t2_mfma(m % 4, act_of(m), f"w{m}", atag(m), None, "0" if m == 0 else None)
            if m + 2 < 72: rd += t2_reads(lds_of(m + 2), (m + 2) % 4, f"w{m+2}")
        g.weave_t(main, [(rd, 2.0)], mer, 64.0 * (hi - lo) / (cnt + 0.5))
        g.ts(f"f:p4 step{hi}")
    assert nw == 56 and nh == 56, (nw, nh)
    g.ts("p4 mfma done")
    vRB = V(16); pk = V(8)
    reduce_send(); g.ts("f:fin sent"); reduce_recv(); g.ts("f:fin recvd")
    for k in range(0, 16, 2):
        if k % 4 == 0: g.wait(lg=f"rb{k//4}")
        g(f"v_pk_add_f32 {vr(vRES+k,2)}, {vr(vRES+k,2)}, {vr(vRB+k,2)}")
        g(f"v_cvt_pk_bf16_f32 v{pk+k//2}, v{vRES+k}, v{vRES+k+1}")
        if k % 8 == 6: g.vmem(f"buffer_store_dwordx4 {vr(pk+4*(k//8),4)}, v{vOUT}, s[{sOUT}:{sOUT+3}], 0 offen offset:{16*(k//8)}", "out")
    if diag:
        g.ts("f:out issued")
        g.wait(vm="all")
        g.ts("end")
        g(f"s_memrealtime s[{sTS}:{sTS+1}]\ns_waitcnt lgkmcnt(0)\nv_writelane_b32 v{vTS}, s{sTS}, 61")
        g(f"s_lshl_b32 s{sT1}, s2, 2\ns_add_u32 s{sT1}, s{sT1}, s{sW}\ns_lshl_b32 s{sT1}, s{sT1}, 8\ns_add_u32 s{sT1}, s{sT1}, {WS_DIAG}\nv_lshlrev_b32 v{vPV}, 2, v{vL}")
        g(f"buffer_store_dword v{vTS}, v{vPV}, s[{sWS}:{sWS+3}], s{sT1} offen")
    if pace:
        g.wait(vm="all"); g.ts("end")
        g(f"s_nop 1\nv_readlane_b32 s{sT2}, v{vTS}, 62\ns_nop 3")
        g.label("Lpace")
        g(f"s_memrealtime s[{sTS}:{sTS+1}]\ns_waitcnt lgkmcnt(0)\ns_sub_u32 s{sT1}, s{sTS}, s{sT2}\ns_cmp_lt_u32 s{sT1}, {pace}\ns_cbranch_scc1 Lpace")
    g("s_endpgm")
    for t_ in g.tail: g(t_)
    g.label("Lend")
    lines, nn = hazard.fix(g.lines, verbose=opt.get("verbose", False))
    wf = lambda body: wrap(body, 256, 256, LDS_BYTES, 512, accum=256)
    if opt.get("align", 1):
        lines, info = align.fix(lines, wf, opt.get("minrun", 3)); print("align widened/padded/left", info)
    return wf("\n".join(lines) + "\n")

if __name__ == "__main__":
    diag = 1 if "--diag" in sys.argv else 3 if "--diag3" in sys.argv else 2 if "--diag2" in sys.argv else 0
    if "--ts" in sys.argv: diag = sys.argv[sys.argv.index("--ts") + 1].split(",") + ["end"]
    out = sys.argv[1]
    pace = int(sys.argv[sys.argv.index("--pace") + 1]) if "--pace" in sys.argv else None
    opt = {}
    for a_ in sys.argv[2:]:
        if "=" in a_:
            k_, v_ = a_.split("=")
            try: opt[k_] = float(v_) if "." in v_ else int(v_)
            except ValueError: opt[k_] = v_.replace("_", " ")
    open(out, "w").write(gen(diag, pace, opt))
    if diag: open(out + ".ts", "w").write("\n".join(TSNAMES))
    print("persist", PERSIST, "peak vgpr", V.peak)
```
